```python
import torch

def _softmax(x, axis=-1):
    return torch.softmax(x, dim=axis)
def _gelu(x):
    return torch.nn.functional.gelu(x, approximate="tanh")
def _silu(x):
    return torch.nn.functional.silu(x)
def _sigmoid(x):
    return torch.sigmoid(x)
def _layernorm(x, axis=-1, eps=1e-5):
    m = x.mean(dim=axis, keepdim=True)
    v = x.var(dim=axis, keepdim=True, unbiased=False)
    return (x - m) / torch.sqrt(v + eps)
def _scatter_add(tgt, idx, src, axis=0):
    return tgt.clone().index_add_(axis, idx, src)
def _segment_sum(src, seg, n):
    out = torch.zeros((n,) + src.shape[1:], dtype=src.dtype)
    return out.index_add_(0, seg, src)
def _pad(x, pw):
    flat = tuple(v for pair in reversed(pw) for v in pair)
    return torch.nn.functional.pad(x, flat)

kernel_name = 'standalone__gqa_softmax__prompt'

def setup_inputs():

    _w = (lambda a: (lambda t: t.to(torch.bfloat16) if t.is_floating_point() else t)(torch.as_tensor(a)))
    B, Hq, Hkv, Sq, Sk, D = 1, 32, 32, 2048, 2048, 192
    return {
        "q": _w((lambda *s: torch.randn(*s, dtype=torch.bfloat16) * 0.8)(B, Hq, Sq, D)),
        "k": _w((lambda *s: torch.randn(*s, dtype=torch.bfloat16) * 0.8)(B, Hkv, Sk, D)),
        "v": _w((lambda *s: torch.randn(*s, dtype=torch.bfloat16) * 0.05)(B, Hkv, Sk, D)),
    }

def reference(q, k, v):
    B, Hq, Sq, D = q.shape
    Hkv = k.shape[1]
    rep = Hq // Hkv
    k = (lambda x, n, axis: torch.repeat_interleave(x, n, dim=axis))(k, rep, axis=1)
    v = (lambda x, n, axis: torch.repeat_interleave(x, n, dim=axis))(v, rep, axis=1)
    scale = D ** -0.5
    scores = torch.einsum("bhqd,bhkd->bhqk", q, k) * scale
    p = _softmax(scores, axis=-1)
    return torch.einsum("bhqk,bhkd->bhqd", p, v)
```

```python
import sys, math, struct

KNAME = "standalone__gqa_softmax__prompt_kernel"
H, SEQ, D = 32, 2048, 192
ROWB = D * 2
TILE = 32
TILEB = TILE * ROWB
NT = SEQ // TILE
HEADB = SEQ * ROWB
TOTB = H * HEADB
CSCALE = math.log2(math.e) / math.sqrt(D)
def f2u(x): return struct.unpack('<I', struct.pack('<f', x))[0]

class Cfg:
    NS = 6
    THR = 65536.0
    stamps = False
    def __init__(self, **kw):
        for k, v in kw.items(): setattr(self, k, v)

V_TID = 0
V_T0, V_T1, V_T2 = 1, 2, 3
V_L = 4
V_LT = 8
V_E = 12
V_KA = 20
V_VA = 22
V_DV = 26
V_X0, V_X1, V_X2 = 29, 30, 31
V_S = 32
V_P = 96
V_NM = 128
V_K = 144
V_V = 192
V_Q = 216
V_Y = 248

def S(p, kb, qb): return V_S + p * 32 + (kb * 4 + qb) * 4
def P(p, qb): return V_P + p * 16 + qb * 4
def NM(qb): return V_NM + qb * 4
def KF(kb, s): return V_K + (kb * 6 + s) * 4
def VF(j): return V_V + j * 4
def vr(b, n=4): return f"v[{b}:{b+n-1}]"
def ar(b, n=4): return f"a[{b}:{b+n-1}]"
def O(qb, dt): return (qb * 12 + dt) * 4
def QF(qb, s):
    n = qb * 6 + s
    return ar(192 + 4 * n) if n < 16 else vr(V_Q + 4 * (n - 16))
def QTMP(qb, s):
    n = qb * 6 + s
    if n < 8: return V_S + 32 + 4 * n
    if n < 14: return V_V + 4 * (n - 8)
    if n < 16: return V_P + 16 + 4 * (n - 14)
    return V_Q + 4 * (n - 16)

S_WG = 2
S_K = 8
S_V = 12
S_O = 16
S_Q = 20
S_W = 24
S_KOFF = 25
S_VOFF = 26
S_KDST = 27
S_VDST = 28
S_STG = 29
S_PREV = 30
S_CNT = 31
S_DK = 32
S_DV = 33
S_THR = 34
S_KW = 35
S_VW = 36
S_RK = 37
S_T0, S_T1, S_T2, S_T3 = 40, 41, 42, 43
S_C = 44
S_CN = 45
S_WS = 48
S_TS = 64

class Emit:
    def __init__(self): self.l = []
    def __call__(self, s): self.l.append("    " + s)
    def lab(self, s): self.l.append(s + ":")
    def raw(self, s): self.l.append(s)
    def text(self): return "\n".join(self.l) + "\n"

class Item:
    def __init__(self, kind, text, target=0, earliest=0, pin=None, deps=(), name=""):
        self.kind = kind
        self.text = text; self.target = target; self.earliest = earliest; self.pin = pin
        self.deps = list(deps)
        self.gap = None; self.name = name

def schedule(ngaps, items, look=2, verbose=False):
    gaps = [dict(D=[], V=[]) for _ in range(ngaps)]
    def cap(g):
        c = 2
        for it in gaps[g]['D'] + gaps[g]['V']:
            c -= 2 if it.kind == 'E' else 1
        return c
    for it in items:
        if it.pin is not None:
            g = gaps[it.pin]
            if it.kind in 'DT': g['D'].append(it)
            else: g['V'].append(it)
            it.gap = it.pin
    for g in range(ngaps):
        nD = [x.kind for x in gaps[g]['D']]
        assert nD.count('D') <= 1 and not ('D' in nD and 'T' in nD) and cap(g) >= 0, (g, nD)
    rest = [it for it in items if it.pin is None]
    for g in range(ngaps):
        while True:
            c = cap(g)
            if c <= 0: break
            cands = []
            for it in rest:
                if it.gap is not None: continue
                if it.earliest > g: continue
                if it.target > g + look: continue
                ok = True
                for d, dist in it.deps:
                    if d.gap is None or d.gap + dist > g: ok = False; break
                if not ok: continue
                if it.kind == 'E' and c < 2: continue
                cands.append(it)
            if not cands: break
            cands.sort(key=lambda x: x.target)
            it = cands[0]
            it.gap = g
            gaps[g]['V'].append(it)
    left = [it for it in rest if it.gap is None]
    assert not left, "unplaced: " + ", ".join(x.name for x in left)
    return gaps

def softmax_items(p, qb, t0, t1, epair0, earliest=0):
    items = []
    vals = [S(p, 0, qb) + i for i in range(4)] + [S(p, 1, qb) + i for i in range(4)]
    lt = V_LT + qb
    seq = []
    prev_add = None
    cons_of_pair = {}
    for u in range(4):
        pr = (epair0 + u) % 4
        e0, e1 = V_E + 2 * pr, V_E + 2 * pr + 1
        E0 = Item('E', f"v_exp_f32 v{e0}, v{vals[2*u]}", name=f"E{qb}.{2*u}")
        E1 = Item('E', f"v_exp_f32 v{e1}, v{vals[2*u+1]}", name=f"E{qb}.{2*u+1}", deps=[(E0, 1)])
        if u == 0:
            A = [Item('V', f"v_add_f32 v{lt}, v{e0}, v{e1}", name=f"A{qb}.01", deps=[(E0, 1), (E1, 1)])]
        else:
            A0 = Item('V', f"v_add_f32 v{lt}, v{lt}, v{e0}", name=f"A{qb}.{2*u}", deps=[(E0, 1), (prev_add, 0)])
            A1 = Item('V', f"v_add_f32 v{lt}, v{lt}, v{e1}", name=f"A{qb}.{2*u+1}", deps=[(E1, 1), (A0, 0)])
            A = [A0, A1]
        prev_add = A[-1]
        C = Item('V', f"v_cvt_pk_bf16_f32 v{P(p,qb)+u}, v{e0}, v{e1}", name=f"C{qb}.{u}", deps=[(E0, 1), (E1, 1)])
        seq += [E0, E1] + A + [C]
        cons_of_pair[u] = (E0, E1, A, C)
    tot = sum(2 if it.kind == 'E' else 1 for it in seq)
    acc = 0
    for it in seq:
        it.target = t0 + (t1 - t0) * acc / tot
        it.earliest = earliest
        acc += 2 if it.kind == 'E' else 1
    return seq, cons_of_pair

def link_pairs(allpairs):
    last = {}
    for pr, (E0, E1, A, C) in allpairs:
        if pr in last:
            pA, pC = last[pr]
            for a in pA: E0.deps.append((a, 0))
            E0.deps.append((pC, 0))
        last[pr] = (A, C)

def gen(cfg):
    NS = cfg.NS
    KBASE = 0
    VBASE = NS * TILEB
    LDS = 2 * NS * TILEB
    e = Emit()
    e.raw(f"; @launch grid=(256,1,1) block=(256,1,1) lds={LDS}")
    e.raw('.amdgcn_target "amdgcn-amd-amdhsa--gfx950"')
    e.raw(".text")
    e.raw(f".globl {KNAME}")
    e.raw(".p2align 8")
    e.raw(f".type {KNAME},@function")
    e.lab(KNAME)
    e("s_cmp_ge_u32 s2, 256")
    e("s_cbranch_scc1 L_end")
    e("s_load_dwordx4 s[4:7], s[0:1], 0")
    e("s_load_dwordx4 s[56:59], s[0:1], 16")
    if cfg.stamps:
        e("s_load_dwordx2 s[60:61], s[0:1], 40")
        e(f"s_memtime s[{S_TS}:{S_TS+1}]")
        e(f"s_memrealtime s[{S_TS+2}:{S_TS+3}]")
    e(f"v_and_b32 v{V_T0}, 63, v0")
    e(f"v_lshrrev_b32 v{V_T1}, 6, v0")
    e(f"v_and_b32 v{V_X0}, 15, v0")
    e(f"v_readfirstlane_b32 s{S_W}, v{V_T1}")
    e(f"v_lshrrev_b32 v{V_X1}, 4, v{V_T0}")
    e(f"s_and_b32 s{S_T0}, s2, 7")
    e(f"s_lshl_b32 s{S_T0}, s{S_T0}, 2")
    e(f"s_lshr_b32 s{S_T1}, s2, 6")
    e(f"s_add_u32 s{S_T0}, s{S_T0}, s{S_T1}")
    e(f"s_lshr_b32 s{S_T1}, s2, 3")
    e(f"s_and_b32 s{S_T1}, s{S_T1}, 7")
    e(f"s_mul_i32 s{S_T2}, s{S_T0}, {HEADB}")
    e(f"s_mul_i32 s{S_T3}, s{S_T1}, {256*ROWB}")
    e(f"s_mul_i32 s{S_T1}, s{S_W}, {64*ROWB}")
    e(f"s_add_u32 s{S_T3}, s{S_T3}, s{S_T1}")
    e(f"s_add_u32 s{S_T3}, s{S_T3}, s{S_T2}")
    e(f"s_mul_i32 s{S_T1}, s{S_W}, 192")
    for ii in range(3):
        e(f"v_add_u32 v{V_T1}, s{S_T1}, v{V_T0}")
        if ii: e(f"v_add_u32 v{V_T1}, {64*ii}, v{V_T1}")
        e(f"v_mul_u32_u24 v{V_T2}, 2731, v{V_T1}")
        e(f"v_lshrrev_b32 v{V_T2}, 16, v{V_T2}")
        e(f"v_mul_u32_u24 v{V_X2}, 24, v{V_T2}")
        e(f"v_sub_u32 v{V_T1}, v{V_T1}, v{V_X2}")
        e(f"v_and_b32 v{V_X2}, 6, v{V_T2}")
        e(f"v_xor_b32 v{V_T1}, v{V_T1}, v{V_X2}")
        e(f"v_lshlrev_b32 v{V_T1}, 4, v{V_T1}")
        e(f"v_mul_u32_u24 v{V_T2}, {ROWB}, v{V_T2}")
        e(f"v_add_u32 v{V_DV+ii}, v{V_T1}, v{V_T2}")
        if ii: e(f"v_subrev_u32 v{V_DV+ii}, {1024*ii}, v{V_DV+ii}")
    e("s_waitcnt lgkmcnt(0)")
    for (sr, lo, hi, off, nrec) in ((S_K, 6, 7, S_T2, HEADB), (S_V, 56, 57, S_T2, HEADB)):
        e(f"s_add_u32 s{sr}, s{lo}, s{off}")
        e(f"s_addc_u32 s{sr+1}, s{hi}, 0")
        e(f"s_mov_b32 s{sr+2}, {nrec}")
        e(f"s_mov_b32 s{sr+3}, 0x20000")
    for (sr, lo, hi) in ((S_Q, 4, 5), (S_O, 58, 59)):
        e(f"s_add_u32 s{sr}, s{lo}, s{S_T3}")
        e(f"s_addc_u32 s{sr+1}, s{hi}, 0")
        e(f"s_mov_b32 s{sr+2}, {64*ROWB}")
        e(f"s_mov_b32 s{sr+3}, 0x20000")
    e(f"s_mul_i32 s{S_T1}, s{S_W}, 3072")
    e(f"s_add_u32 s{S_KW}, s{S_T1}, {KBASE}")
    e(f"s_add_u32 s{S_VW}, s{S_T1}, {VBASE}")
    def dma(srd, soff, dstexpr):
        e(dstexpr)
        e("s_nop 0")
        for ii in range(3):
            o = f" offset:{1024*ii}" if ii else ""
            e(f"buffer_load_dwordx4 v{V_DV+ii}, s[{srd}:{srd+3}], {soff} offen{o} lds")
    def dmaK(t):
        e(f"s_mov_b32 s{S_T1}, {t*TILEB}")
        dma(S_K, f"s{S_T1}", f"s_add_u32 m0, s{S_KW}, {(t % NS)*TILEB}")
    def dmaV(t):
        e(f"s_mov_b32 s{S_T1}, {t*TILEB}")
        dma(S_V, f"s{S_T1}", f"s_add_u32 m0, s{S_VW}, {(t % NS)*TILEB}")
    dmaK(0); dmaK(1)
    e(f"v_mul_u32_u24 v{V_T1}, {ROWB}, v{V_X0}")
    e(f"v_lshl_add_u32 v{V_T1}, v{V_X1}, 4, v{V_T1}")
    for qb in range(4):
        e(f"s_mov_b32 s{S_T1}, {qb*16*ROWB}")
        for s in range(6):
            e(f"buffer_load_dwordx4 {vr(QTMP(qb,s))}, v{V_T1}, s[{S_Q}:{S_Q+3}], s{S_T1} offen offset:{s*64}")
    dmaV(0)
    for t in range(2, NS):
        dmaK(t); dmaV(t - 1)
    NREST = 3 * (2 * NS - 3)
    e(f"v_and_b32 v{V_T1}, 6, v{V_X0}")
    e(f"v_xor_b32 v{V_T1}, v{V_T1}, v{V_X1}")
    e(f"v_lshlrev_b32 v{V_T1}, 4, v{V_T1}")
    e(f"v_mul_u32_u24 v{V_T2}, {ROWB}, v{V_X0}")
    e(f"v_add_u32 v{V_KA}, v{V_T1}, v{V_T2}")
    if KBASE: e(f"v_add_u32 v{V_KA}, {KBASE}, v{V_KA}")
    e(f"v_xor_b32 v{V_KA+1}, 64, v{V_KA}")
    e(f"v_lshrrev_b32 v{V_T1}, 2, v{V_X0}")
    e(f"v_lshl_add_u32 v{V_T1}, v{V_X1}, 2, v{V_T1}")
    e(f"v_and_b32 v{V_T2}, 6, v{V_T1}")
    e(f"v_bfe_u32 v{V_X2}, v{V_X0}, 1, 1")
    e(f"v_or_b32 v{V_T2}, v{V_T2}, v{V_X2}")
    e(f"v_lshlrev_b32 v{V_T2}, 4, v{V_T2}")
    e(f"v_and_b32 v{V_X2}, 1, v{V_X0}")
    e(f"v_lshl_add_u32 v{V_T2}, v{V_X2}, 3, v{V_T2}")
    e(f"v_mul_u32_u24 v{V_T1}, {ROWB}, v{V_T1}")
    e(f"v_add_u32 v{V_VA}, v{V_T1}, v{V_T2}")
    e(f"v_add_u32 v{V_VA}, {VBASE}, v{V_VA}")
    for j in range(1, 4):
        e(f"v_xor_b32 v{V_VA+j}, {j<<5}, v{V_VA}")
    for i in range(192): e(f"v_accvgpr_write_b32 a{i}, 0")
    for i in range(4): e(f"v_mov_b32 v{V_L+i}, 0")
    e(f"s_mov_b32 s{S_C}, {hex(f2u(CSCALE))}")
    e(f"s_mov_b32 s{S_THR}, {hex(f2u(cfg.THR))}")
    e(f"s_mov_b32 s{S_CN}, {hex((-(NS-1)*TILEB) & 0xffffffff)}")
    e(f"s_mov_b32 s{S_KOFF}, {min(NS, NT-1)*TILEB}")
    e(f"s_mov_b32 s{S_VOFF}, {(NS-1)*TILEB}")
    e(f"s_mov_b32 s{S_STG}, 0")
    e(f"s_mov_b32 s{S_PREV}, {(NS-1)*TILEB}")
    e(f"s_mov_b32 s{S_CNT}, 0")
    e(f"s_waitcnt vmcnt({24 + NREST})")
    e("s_barrier")
    def kread(kb, s, extra=0):
        off = kb * 16 * ROWB + (s >> 1) * 128 + extra
        return f"ds_read_b128 {vr(KF(kb,s))}, v{V_KA + (s & 1)} offset:{off}"
    def vread(dt, hh):
        off = hh * 16 * ROWB + (dt >> 2) * 128
        b = VF(dt % 6) + 2 * hh
        return f"ds_read_b64_tr_b16 v[{b}:{b+1}], v{V_VA + (dt & 3)} offset:{off}"
    for kb in range(2):
        for s in range(6): e(kread(kb, s))
    def xlane(op, x, t):
        e(f"v_mov_b32 v{t}, v{x}")
        e("s_nop 1")
        e(f"v_permlane16_swap_b32 v{x}, v{t}")
        e("s_nop 1")
        e(f"{op} v{x}, v{x}, v{t}")
        e(f"v_mov_b32 v{t}, v{x}")
        e("s_nop 1")
        e(f"v_permlane32_swap_b32 v{x}, v{t}")
        e("s_nop 1")
        e(f"{op} v{x}, v{x}, v{t}")
    def softmax_plain(p, qb):
        vals = [S(p, 0, qb) + i for i in range(4)] + [S(p, 1, qb) + i for i in range(4)]
        lt = V_LT + qb
        for u in range(4):
            e0, e1 = V_E + 2 * u, V_E + 2 * u + 1
            e(f"v_exp_f32 v{e0}, v{vals[2*u]}")
            e(f"v_exp_f32 v{e1}, v{vals[2*u+1]}")
        e("s_nop 0")
        e(f"v_add_f32 v{lt}, v{V_E}, v{V_E+1}")
        for k in range(2, 8): e(f"v_add_f32 v{lt}, v{lt}, v{V_E+k}")
        for u in range(4):
            e(f"v_cvt_pk_bf16_f32 v{P(p,qb)+u}, v{V_E+2*u}, v{V_E+2*u+1}")
    for qb in range(4):
        e(f"s_waitcnt vmcnt({NREST + (3-qb)*6})")
        for s in range(6):
            src = QTMP(qb, s); n = qb * 6 + s
            for r in range(4):
                x = src + r
                e(f"v_and_b32 v{V_X0}, 0xffff0000, v{x}")
                e(f"v_lshlrev_b32 v{V_X1}, 16, v{x}")
                e(f"v_mul_f32 v{V_X0}, s{S_C}, v{V_X0}")
                e(f"v_mul_f32 v{V_X1}, s{S_C}, v{V_X1}")
                if n < 16:
                    e(f"v_cvt_pk_bf16_f32 v{V_X2}, v{V_X1}, v{V_X0}")
                    e(f"v_accvgpr_write_b32 a{192+4*n+r}, v{V_X2}")
                else:
                    e(f"v_cvt_pk_bf16_f32 v{x}, v{V_X1}, v{V_X0}")
        if qb == 0: e("s_waitcnt lgkmcnt(0)")
        e("s_nop 1")
        for kb in range(2):
            for s in range(6):
                c = "0" if s == 0 else vr(S(0, kb, qb))
                e(f"v_mfma_f32_16x16x32_bf16 {vr(S(0,kb,qb))}, {vr(KF(kb,s))}, {QF(qb,s)}, {c}")
        e("s_nop 7")
        e("s_nop 1")
        a = S(0, 0, qb); b = S(0, 1, qb); m = V_X0
        e(f"v_max3_f32 v{m}, v{a}, v{a+1}, v{a+2}")
        e(f"v_max3_f32 v{m}, v{m}, v{a+3}, v{b}")
        e(f"v_max3_f32 v{m}, v{m}, v{b+1}, v{b+2}")
        e(f"v_max_f32 v{m}, v{m}, v{b+3}")
        xlane("v_max_f32", m, V_X1)
        for r in range(4):
            e(f"v_sub_f32 v{NM(qb)+r}, 0, v{m}")
        for r in range(4):
            e(f"v_sub_f32 v{a+r}, v{a+r}, v{m}")
            e(f"v_sub_f32 v{b+r}, v{b+r}, v{m}")
        if qb < 2: softmax_plain(0, qb)
    e(f"v_add_u32 v{V_KA}, {TILEB % (NS*TILEB) if NS > 1 else 0}, v{V_KA}")
    e(f"v_add_u32 v{V_KA+1}, {TILEB}, v{V_KA+1}")
    for s in range(6): e(kread(0, s))
    e(f"s_mov_b32 s{S_RK}, {TILEB}")
    e("s_waitcnt lgkmcnt(0)")
    if cfg.stamps:
        e(f"s_memtime s[{S_TS+4}:{S_TS+5}]")
        e("s_waitcnt lgkmcnt(0)")

    VMW = 3 + 6 * (NS - 3)

    def phaseA(p, last):
        items = []
        pairs = []
        if not last:
            for s in range(6):
                items.append(Item('D', kread(1, s), pin=2 * s, name=f"K1.{s}"))
        for dt in range(6):
            for hh in range(2):
                items.append(Item('T', vread(dt, hh), pin=24 + 3 * dt, name=f"V{dt}.{hh}"))
        s2, c2 = softmax_items(p, 2, 0, 20, 0)
        s3, c3 = softmax_items(p, 3, 20, 41, 0)
        for u in range(4): pairs.append((u, c2[u]))
        for u in range(4): pairs.append((u, c3[u]))
        link_pairs(pairs)
        items += s2 + s3
        lastA3 = [it for it in s3 if it.name == "A3.7"][0]
        lastA2 = [it for it in s2 if it.name == "A2.7"][0]
        M1 = Item('V', f"v_max3_f32 v{V_X0}, v{V_LT}, v{V_LT+1}, v{V_LT+2}", target=43, deps=[(lastA2, 0)], name="M1")
        M2 = Item('V', f"v_max_f32 v{V_X0}, v{V_X0}, v{V_LT+3}", target=44, deps=[(lastA3, 0), (M1, 0)], name="M2")
        CM = Item('V', f"v_cmp_nle_f32 vcc, v{V_X0}, s{S_THR}" if False else f"v_cmp_nge_f32 vcc, s{S_THR}, v{V_X0}", target=45, deps=[(M2, 0)], name="CMP")
        items += [M1, M2, CM]
        gaps = schedule(48, items)
        assert CM.gap <= 46, CM.gap
        sh = {g: [] for g in range(48)}
        sh[0].append(f"s_waitcnt vmcnt({VMW})")
        sh[1].append("s_barrier")
        if not last:
            sh[2].append(f"s_add_u32 m0, s{S_KW}, s{S_STG}")
            sh[4].append(f"buffer_load_dwordx4 v{V_DV}, s[{S_K}:{S_K+3}], s{S_KOFF} offen lds")
            sh[8].append(f"buffer_load_dwordx4 v{V_DV+1}, s[{S_K}:{S_K+3}], s{S_KOFF} offen offset:1024 lds")
            sh[12].append(f"buffer_load_dwordx4 v{V_DV+2}, s[{S_K}:{S_K+3}], s{S_KOFF} offen offset:2048 lds")
            sh[14].append(f"s_add_u32 m0, s{S_VW}, s{S_PREV}")
            sh[16].append(f"buffer_load_dwordx4 v{V_DV}, s[{S_V}:{S_V+3}], s{S_VOFF} offen lds")
            sh[20].append(f"buffer_load_dwordx4 v{V_DV+1}, s[{S_V}:{S_V+3}], s{S_VOFF} offen offset:1024 lds")
            sh[26].append(f"buffer_load_dwordx4 v{V_DV+2}, s[{S_V}:{S_V+3}], s{S_VOFF} offen offset:2048 lds")
            sh[28].append(f"s_add_u32 s{S_KOFF}, s{S_KOFF}, {TILEB}")
            sh[29].append(f"s_min_u32 s{S_KOFF}, s{S_KOFF}, {(NT-1)*TILEB}")
            sh[30].append(f"s_add_u32 s{S_VOFF}, s{S_VOFF}, {TILEB}")
            sh[31].append(f"s_min_u32 s{S_VOFF}, s{S_VOFF}, {(NT-1)*TILEB}")
            sh[32].append(f"s_mov_b32 s{S_PREV}, s{S_STG}")
            sh[33].append(f"s_add_u32 s{S_STG}, s{S_STG}, {TILEB}")
            sh[34].append(f"s_cmp_eq_u32 s{S_STG}, {NS*TILEB}")
            sh[35].append(f"s_cselect_b32 s{S_STG}, 0, s{S_STG}")
            sh[36].append(f"s_mov_b32 s{S_DV}, s{S_DK}")
            sh[37].append(f"s_add_u32 s{S_RK}, s{S_RK}, {TILEB}")
            sh[38].append(f"s_cmp_eq_u32 s{S_RK}, {NS*TILEB}")
            sh[39].append(f"s_cselect_b32 s{S_DK}, s{S_CN}, {TILEB}")
            sh[40].append(f"s_cselect_b32 s{S_RK}, 0, s{S_RK}")
            sh[23].append("s_waitcnt lgkmcnt(0)")
        sh[46].append("s_waitcnt lgkmcnt(0)")
        sh[47].append(f"s_cbranch_vccnz L_fb{'L' if last else p}")
        for g in range(48):
            if not last:
                kb, qb, s = g // 24, (g % 24) // 6, g % 6
                d = vr(S(1 - p, kb, qb))
                c = vr(NM(qb)) if s == 0 else d
                e(f"v_mfma_f32_16x16x32_bf16 {d}, {vr(KF(kb,s))}, {QF(qb,s)}, {c}")
            for x in sh[g]: e(x)
            if g == 47: e.lab(f"L_ret{'L' if last else p}")
            prevE = False
            for it in gaps[g]['D'] + gaps[g]['V']:
                e(it.text)
            if last:
                if any(it.kind == 'E' for it in gaps[g]['V']): e("s_nop 0")
        return gaps

    def phaseB(p, last):
        items = []
        LA = [Item('V', f"v_add_f32 v{V_L+q}, v{V_L+q}, v{V_LT+q}", pin=q // 2, name=f"L{q}") for q in range(4)]
        items += LA
        VR = []
        for dt in range(6, 12):
            for hh in range(2):
                it = Item('T', vread(dt, hh), pin=4 * (dt - 6) + 4, name=f"V{dt}.{hh}")
                items.append(it); VR.append(it)
        if not last:
            U = [Item('V', f"v_add_u32 v{V_KA+i}, s{S_DK}, v{V_KA+i}", pin=2, name=f"UK{i}") for i in range(2)]
            items += U
            for s in range(6):
                items.append(Item('D', kread(0, s), pin=26 + 2 * s, name=f"K0.{s}"))
            UV = [Item('V', f"v_add_u32 v{V_VA+i}, s{S_DV}, v{V_VA+i}", target=40 + i, earliest=25, name=f"UV{i}") for i in range(4)]
            items += UV
            s0, c0 = softmax_items(1 - p, 0, 3, 24, 0, earliest=2)
            s1, c1 = softmax_items(1 - p, 1, 24, 45, 0, earliest=2)
            pairs = [(u, c0[u]) for u in range(4)] + [(u, c1[u]) for u in range(4)]
            link_pairs(pairs)
            items += s0 + s1
        gaps = schedule(48, items)
        sh = {g: [] for g in range(48)}
        order = []
        for g in range(48):
            for it in gaps[g]['D']: order.append((g, it))
        def waitcnt_for(names, at):
            idx = max(i for i, (g, it) in enumerate(order) if it.name in names)
            assert order[idx][0] <= at
            n = sum(1 for i, (g, it) in enumerate(order) if i > idx and g < at)
            return n
        sh[23].append(f"s_waitcnt lgkmcnt({waitcnt_for(['V8.1'], 23)})")
        sh[35].append(f"s_waitcnt lgkmcnt({waitcnt_for(['V11.1'], 35)})")
        if not last:
            sh[47].append("s_waitcnt lgkmcnt(0)")
        for g in range(48):
            dt, qb = g // 4, g % 4
            e(f"v_mfma_f32_16x16x32_bf16 {ar(O(qb,dt))}, {vr(VF(dt%6))}, {vr(P(p,qb))}, {ar(O(qb,dt))}")
            for x in sh[g]: e(x)
            for it in gaps[g]['D'] + gaps[g]['V']:
                e(it.text)
        return gaps

    def fallback(p, tag, last):
        e.lab(f"L_fb{tag}")
        e("s_nop 7"); e("s_nop 7")
        for qb in range(4):
            a = S(p, 0, qb); b = S(p, 1, qb); m = V_X0
            e(f"v_max3_f32 v{m}, v{a}, v{a+1}, v{a+2}")
            e(f"v_max3_f32 v{m}, v{m}, v{a+3}, v{b}")
            e(f"v_max3_f32 v{m}, v{m}, v{b+1}, v{b+2}")
            e(f"v_max_f32 v{m}, v{m}, v{b+3}")
            xlane("v_max_f32", m, V_X1)
            e(f"v_max_f32 v{m}, 0, v{m}")
            for r in range(4):
                e(f"v_sub_f32 v{NM(qb)+r}, v{NM(qb)+r}, v{m}")
                e(f"v_sub_f32 v{a+r}, v{a+r}, v{m}")
                e(f"v_sub_f32 v{b+r}, v{b+r}, v{m}")
                if not last:
                    e(f"v_sub_f32 v{S(1-p,0,qb)+r}, v{S(1-p,0,qb)+r}, v{m}")
                    e(f"v_sub_f32 v{S(1-p,1,qb)+r}, v{S(1-p,1,qb)+r}, v{m}")
            e(f"v_sub_f32 v{V_X1}, 0, v{m}")
            e(f"v_exp_f32 v{V_X1}, v{V_X1}")
            e("s_nop 0")
            e(f"v_mul_f32 v{V_L+qb}, v{V_L+qb}, v{V_X1}")
            for dt in range(12):
                for r in range(4):
                    e(f"v_accvgpr_read_b32 v{V_X2}, a{O(qb,dt)+r}")
                    e(f"v_mul_f32 v{V_X2}, v{V_X2}, v{V_X1}")
                    e(f"v_accvgpr_write_b32 a{O(qb,dt)+r}, v{V_X2}")
            softmax_plain(p, qb)
        e("s_nop 3")
        e(f"s_branch L_ret{tag}")

    e(f"s_mov_b32 s{S_DK}, {TILEB}")
    e(".p2align 6")
    e.lab("L_loop")
    ga0 = phaseA(0, False); gb0 = phaseB(0, False)
    e(f"s_add_u32 s{S_CNT}, s{S_CNT}, 2")
    e(f"s_cmp_ge_u32 s{S_CNT}, {NT}")
    e("s_cbranch_scc1 L_tail")
    ga1 = phaseA(1, False); gb1 = phaseB(1, False)
    e("s_branch L_loop")
    e.lab("L_tail")
    phaseA(1, True); phaseB(1, True)
    if cfg.stamps:
        e(f"s_memtime s[{S_TS+6}:{S_TS+7}]")
    e("s_nop 7"); e("s_nop 1")
    e(f"v_and_b32 v{V_X0}, 15, v0")
    e(f"v_bfe_u32 v{V_X1}, v0, 4, 2")
    e(f"v_mul_u32_u24 v{V_T0}, {ROWB}, v{V_X0}")
    e(f"v_and_b32 v{V_X2}, 1, v{V_X1}")
    e(f"v_lshl_add_u32 v{V_T0}, v{V_X2}, 5, v{V_T0}")
    e(f"v_lshrrev_b32 v{V_X2}, 1, v{V_X1}")
    e(f"v_lshl_add_u32 v{V_T0}, v{V_X2}, 4, v{V_T0}")
    for qb in range(4):
        xlane("v_add_f32", V_L + qb, V_X1)
        e(f"v_rcp_f32 v{V_L+qb}, v{V_L+qb}")
    tb = V_S
    for qb in range(4):
        e(f"s_mov_b32 s{S_T1}, {qb*16*ROWB}")
        for u in range(6):
            t = tb + ((qb * 6 + u) % 4) * 12
            for hh in range(2):
                for r in range(4):
                    e(f"v_accvgpr_read_b32 v{t+4*hh+r}, a{O(qb,2*u+hh)+r}")
            for k in range(8):
                e(f"v_mul_f32 v{t+k}, v{t+k}, v{V_L+qb}")
            e(f"v_cvt_pk_bf16_f32 v{t+8}, v{t}, v{t+1}")
            e(f"v_cvt_pk_bf16_f32 v{t+9}, v{t+2}, v{t+3}")
            e(f"v_cvt_pk_bf16_f32 v{t+10}, v{t+4}, v{t+5}")
            e(f"v_cvt_pk_bf16_f32 v{t+11}, v{t+6}, v{t+7}")
            e("s_nop 1")
            e(f"v_permlane16_swap_b32 v{t+8}, v{t+10}")
            e(f"v_permlane16_swap_b32 v{t+9}, v{t+11}")
            e("s_nop 1")
            e(f"buffer_store_dwordx4 v[{t+8}:{t+11}], v{V_T0}, s[{S_O}:{S_O+3}], s{S_T1} offen offset:{u*64}")
    if cfg.stamps:
        e("s_waitcnt vmcnt(0)")
        e(f"s_memtime s[{S_TS+8}:{S_TS+9}]")
        e(f"s_memrealtime s[{S_TS+10}:{S_TS+11}]")
        e("s_waitcnt lgkmcnt(0)")
        e(f"s_mov_b32 s{S_WS}, s60"); e(f"s_mov_b32 s{S_WS+1}, s61"); e(f"s_mov_b32 s{S_WS+2}, 0x100000"); e(f"s_mov_b32 s{S_WS+3}, 0x20000")
        e(f"s_sub_u32 s{S_T0}, s{S_TS+8}, s{S_TS}"); e(f"v_mov_b32 v2, s{S_T0}")
        e(f"s_sub_u32 s{S_T0}, s{S_TS+10}, s{S_TS+2}"); e(f"v_mov_b32 v3, s{S_T0}")
        e(f"s_sub_u32 s{S_T0}, s{S_TS+4}, s{S_TS}"); e(f"v_mov_b32 v4, s{S_T0}")
        e(f"s_sub_u32 s{S_T0}, s{S_TS+6}, s{S_TS+4}"); e(f"v_mov_b32 v5, s{S_T0}")
        e(f"s_sub_u32 s{S_T0}, s{S_TS+8}, s{S_TS+6}"); e(f"v_mov_b32 v6, s{S_T0}")
        for j in (7, 8, 9): e(f"v_mov_b32 v{j}, 0")
        e("s_lshl_b32 s3, s2, 5")
        e("v_mov_b32 v10, s3")
        e("v_cmp_eq_u32 vcc, 0, v0")
        e("s_and_saveexec_b64 s[62:63], vcc")
        e("s_cbranch_execz L_end")
        e(f"buffer_store_dwordx4 v[2:5], v10, s[{S_WS}:{S_WS+3}], 0 offen")
        e(f"buffer_store_dwordx4 v[6:9], v10, s[{S_WS}:{S_WS+3}], 0 offen offset:16")
    e.lab("L_end")
    e("s_endpgm")
    fallback(0, "0", False)
    fallback(1, "1", False)
    fallback(1, "L", True)
    e.raw('.section .rodata,"a"')
    e.raw(".p2align 6")
    e.raw(f".amdhsa_kernel {KNAME}")
    e.raw("  .amdhsa_next_free_vgpr 512")
    e.raw("  .amdhsa_next_free_sgpr 96")
    e.raw("  .amdhsa_accum_offset 256")
    e.raw("  .amdhsa_group_segment_fixed_size 0")
    e.raw("  .amdhsa_kernarg_size 48")
    e.raw("  .amdhsa_user_sgpr_count 2")
    e.raw("  .amdhsa_user_sgpr_kernarg_segment_ptr 1")
    e.raw("  .amdhsa_system_sgpr_workgroup_id_x 1")
    e.raw(".end_amdhsa_kernel")
    info = dict(ga0=ga0, gb0=gb0)
    return e.text(), info

def show(gaps, tag):
    print(tag)
    for g, x in enumerate(gaps):
        print(f"  {g:2d}: " + " | ".join(it.name for it in x['D'] + x['V']))

if __name__ == "__main__":
    import argparse
    ap = argparse.ArgumentParser()
    ap.add_argument("-o", default="standalone__gqa_softmax__prompt.s")
    ap.add_argument("--stamps", action="store_true")
    ap.add_argument("--show", action="store_true")
    ap.add_argument("--NS", type=int, default=6)
    ap.add_argument("--THR", type=float, default=65536.0)
    a = ap.parse_args()
    cfg = Cfg(stamps=a.stamps, NS=a.NS, THR=a.THR)
    txt, info = gen(cfg)
    open(a.o, "w").write(txt)
    if a.show:
        show(info['ga0'], "phase A"); show(info['gb0'], "phase B")
    print("wrote", a.o, len(txt), "bytes")
```

```python
import sys, math, struct

KNAME = "standalone__gqa_softmax__prompt_kernel"
H, SEQ, D = 32, 2048, 192
ROWB = D * 2
TILE = 32
TILEB = TILE * ROWB
NT = SEQ // TILE
HEADB = SEQ * ROWB
CSCALE = math.log2(math.e) / math.sqrt(D)
OPAD = 400
def f2u(x): return struct.unpack('<I', struct.pack('<f', x))[0]

class Cfg:
    NS = 4
    THR = 65536.0
    stamps = ""
    qnt = True
    kvnt = False
    ont = False
    abl = ()
    edist = 2
    look = 2
    dmaK = (4, 8, 12)
    dmaV = (16, 20, 26)
    bar_gap = 1
    def __init__(self, **kw):
        for k, v in kw.items(): setattr(self, k, v)

V_T0, V_T1, V_T2 = 1, 2, 3
V_L = 4
V_LT = 8
V_E = 12
V_KA = 20
V_VA = 22
V_DV = 26
V_X0, V_X1, V_X2 = 29, 30, 31
V_S = 32
V_P = 96
V_NM = 128
V_K = 144
V_V = 192
V_Q = 216
V_Y = 248

def S(p, kb, qb): return V_S + p * 32 + (kb * 4 + qb) * 4
def P(p, qb): return V_P + p * 16 + qb * 4
def NM(qb): return V_NM + qb * 4
def KF(kb, s): return V_K + (kb * 6 + s) * 4
def VF(j): return V_V + j * 4
def vr(b, n=4): return f"v[{b}:{b+n-1}]"
def ar(b, n=4): return f"a[{b}:{b+n-1}]"
def O(qb, dt): return (qb * 12 + dt) * 4
def QF(qb, s):
    n = qb * 6 + s
    return ar(192 + 4 * n) if n < 16 else vr(V_Q + 4 * (n - 16))
def QTMP(qb, s):
    n = qb * 6 + s
    if n < 8: return V_S + 32 + 4 * n
    if n < 14: return V_V + 4 * (n - 8)
    if n < 16: return V_P + 16 + 4 * (n - 14)
    return V_Q + 4 * (n - 16)

S_K, S_V, S_O, S_Q = 8, 12, 16, 20
S_W = 24
S_KOFF = 25
S_VOFF = 26
S_CNT = 31
S_THR = 34
S_KW = 35
S_VW = 36
S_RET = 37
S_T0, S_T1, S_T2, S_T3 = 40, 41, 42, 43
S_C = 44
S_WS = 48
S_TS = 64

class Emit:
    def __init__(self): self.l = []; self.filt = None
    def __call__(self, s):
        if self.filt and self.filt(s): return
        self.l.append("    " + s)
    def lab(self, s): self.l.append(s + ":")
    def raw(self, s): self.l.append(s)
    def text(self): return "\n".join(self.l) + "\n"

class Item:
    def __init__(self, kind, text, target=0, earliest=0, pin=None, deps=(), name=""):
        self.kind = kind; self.text = text; self.target = target; self.earliest = earliest; self.pin = pin
        self.deps = list(deps); self.gap = None; self.name = name

def schedule(ngaps, items, look=2, light=()):
    gaps = [dict(D=[], V=[]) for _ in range(ngaps)]
    def cap(g):
        c = 1 if g in light else 2
        for it in gaps[g]['D'] + gaps[g]['V']:
            c -= 2 if it.kind == 'E' else 1
        return c
    for it in items:
        if it.pin is not None:
            g = gaps[it.pin]
            (g['D'] if it.kind in 'DT' else g['V']).append(it)
            it.gap = it.pin
    for g in range(ngaps):
        nD = [x.kind for x in gaps[g]['D']]
        assert nD.count('D') <= 1 and not ('D' in nD and 'T' in nD), (g, nD)
    rest = [it for it in items if it.pin is None]
    for g in range(ngaps):
        while True:
            c = cap(g)
            if c <= 0: break
            cands = []
            for it in rest:
                if it.gap is not None or it.earliest > g or it.target > g + look: continue
                if any(d.gap is None or d.gap + dist > g for d, dist in it.deps): continue
                if it.kind == 'E' and c < 2: continue
                cands.append(it)
            if not cands: break
            cands.sort(key=lambda x: x.target)
            it = cands[0]
            it.gap = g
            gaps[g]['V'].append(it)
    left = [it for it in rest if it.gap is None]
    assert not left, "unplaced: " + ", ".join(x.name for x in left)
    return gaps

def softmax_items(p, qb, t0, t1, edist, earliest=0):
    vals = [S(p, 0, qb) + i for i in range(4)] + [S(p, 1, qb) + i for i in range(4)]
    lt = V_LT + qb
    seq = []; prev_add = None; cons = {}
    for u in range(4):
        e0, e1 = V_E + 2 * u, V_E + 2 * u + 1
        E0 = Item('E', f"v_exp_f32 v{e0}, v{vals[2*u]}", name=f"E{qb}.{2*u}")
        E1 = Item('E', f"v_exp_f32 v{e1}, v{vals[2*u+1]}", name=f"E{qb}.{2*u+1}", deps=[(E0, 1)])
        if u == 0:
            A = [Item('V', f"v_add_f32 v{lt}, v{e0}, v{e1}", name=f"A{qb}.01", deps=[(E0, edist), (E1, edist)])]
        else:
            A0 = Item('V', f"v_add_f32 v{lt}, v{lt}, v{e0}", name=f"A{qb}.{2*u}", deps=[(E0, edist), (prev_add, 0)])
            A1 = Item('V', f"v_add_f32 v{lt}, v{lt}, v{e1}", name=f"A{qb}.{2*u+1}", deps=[(E1, edist), (A0, 0)])
            A = [A0, A1]
        prev_add = A[-1]
        C = Item('V', f"v_cvt_pk_bf16_f32 v{P(p,qb)+u}, v{e0}, v{e1}", name=f"C{qb}.{u}", deps=[(E0, edist), (E1, edist)])
        seq += [E0, E1] + A + [C]
        cons[u] = (E0, E1, A, C)
    tot = sum(2 if it.kind == 'E' else 1 for it in seq)
    acc = 0
    for it in seq:
        it.target = t0 + (t1 - t0) * acc / tot
        it.earliest = earliest
        acc += 2 if it.kind == 'E' else 1
    return seq, cons

def link_pairs(allpairs):
    last = {}
    for pr, (E0, E1, A, C) in allpairs:
        if pr in last:
            pA, pC = last[pr]
            for a in pA: E0.deps.append((a, 0))
            E0.deps.append((pC, 0))
        last[pr] = (A, C)

def gen(cfg):
    NS = cfg.NS; U = NS
    assert U % 2 == 0 and NT % U == 0
    KBASE = 0
    VBASE = NS * TILEB
    OBASE = 2 * NS * TILEB
    LDS = OBASE + 4 * 2 * 16 * OPAD
    assert LDS <= 163840
    e = Emit()
    e.raw(f"; @launch grid=(256,1,1) block=(256,1,1) lds={LDS}")
    e.raw('.amdgcn_target "amdgcn-amd-amdhsa--gfx950"')
    e.raw(".text")
    e.raw(f".globl {KNAME}")
    e.raw(".p2align 8")
    e.raw(f".type {KNAME},@function")
    e.lab(KNAME)
    def stamp(k, mode):
        if cfg.stamps == mode: e(f"s_memtime s[{76+2*k}:{77+2*k}]")
    KVF = " nt" if cfg.kvnt else ""
    e("s_cmp_ge_u32 s2, 256")
    e("s_cbranch_scc1 L_end")
    e("s_load_dwordx4 s[4:7], s[0:1], 0")
    e("s_load_dwordx4 s[56:59], s[0:1], 16")
    if cfg.stamps:
        e("s_load_dwordx2 s[60:61], s[0:1], 40")
        e(f"s_memtime s[{S_TS}:{S_TS+1}]")
        e(f"s_memrealtime s[{S_TS+2}:{S_TS+3}]")
    e(f"v_and_b32 v{V_T0}, 63, v0")
    e(f"v_lshrrev_b32 v{V_T1}, 6, v0")
    e(f"v_and_b32 v{V_X0}, 15, v0")
    e(f"v_readfirstlane_b32 s{S_W}, v{V_T1}")
    e(f"v_lshrrev_b32 v{V_X1}, 4, v{V_T0}")
    e(f"s_and_b32 s{S_T0}, s2, 7")
    e(f"s_lshl_b32 s{S_T0}, s{S_T0}, 2")
    e(f"s_lshr_b32 s{S_T1}, s2, 6")
    e(f"s_add_u32 s{S_T0}, s{S_T0}, s{S_T1}")
    e(f"s_lshr_b32 s{S_T1}, s2, 3")
    e(f"s_and_b32 s{S_T1}, s{S_T1}, 7")
    e(f"s_mul_i32 s{S_T2}, s{S_T0}, {HEADB}")
    e(f"s_mul_i32 s{S_T3}, s{S_T1}, {256*ROWB}")
    e(f"s_mul_i32 s{S_T1}, s{S_W}, {64*ROWB}")
    e(f"s_add_u32 s{S_T3}, s{S_T3}, s{S_T1}")
    e(f"s_add_u32 s{S_T3}, s{S_T3}, s{S_T2}")
    e(f"s_mul_i32 s{S_T1}, s{S_W}, 192")
    for ii in range(3):
        e(f"v_add_u32 v{V_T1}, s{S_T1}, v{V_T0}")
        if ii: e(f"v_add_u32 v{V_T1}, {64*ii}, v{V_T1}")
        e(f"v_mul_u32_u24 v{V_T2}, 2731, v{V_T1}")
        e(f"v_lshrrev_b32 v{V_T2}, 16, v{V_T2}")
        e(f"v_mul_u32_u24 v{V_X2}, 24, v{V_T2}")
        e(f"v_sub_u32 v{V_T1}, v{V_T1}, v{V_X2}")
        e(f"v_and_b32 v{V_X2}, 6, v{V_T2}")
        e(f"v_xor_b32 v{V_T1}, v{V_T1}, v{V_X2}")
        e(f"v_lshlrev_b32 v{V_T1}, 4, v{V_T1}")
        e(f"v_mul_u32_u24 v{V_T2}, {ROWB}, v{V_T2}")
        e(f"v_add_u32 v{V_DV+ii}, v{V_T1}, v{V_T2}")
        if ii: e(f"v_subrev_u32 v{V_DV+ii}, {1024*ii}, v{V_DV+ii}")
    e(f"v_mul_u32_u24 v{V_Y}, {ROWB}, v{V_X0}")
    e(f"v_lshl_add_u32 v{V_Y}, v{V_X1}, 4, v{V_Y}")
    e(f"s_mul_i32 s{S_T1}, s{S_W}, 3072")
    e(f"s_add_u32 s{S_KW}, s{S_T1}, {KBASE}")
    e(f"s_add_u32 s{S_VW}, s{S_T1}, {VBASE}")
    e("s_waitcnt lgkmcnt(0)")
    stamp(0, 'pro2')
    def srd(sr, lo, hi, off, nrec):
        e(f"s_add_u32 s{sr}, s{lo}, s{off}")
        e(f"s_addc_u32 s{sr+1}, s{hi}, 0")
        e(f"s_mov_b32 s{sr+2}, {nrec}")
        e(f"s_mov_b32 s{sr+3}, 0x20000")
    srd(S_K, 6, 7, S_T2, HEADB)
    vq = []
    def dma(srd_, t, wreg, tag):
        e(f"s_mov_b32 s{S_T1}, {t*TILEB}")
        e(f"s_add_u32 m0, s{wreg}, {(t % NS)*TILEB}")
        e("s_nop 0")
        for ii in range(3):
            o = f" offset:{1024*ii}" if ii else ""
            e(f"buffer_load_dwordx4 v{V_DV+ii}, s[{srd_}:{srd_+3}], s{S_T1} offen{o}{KVF} lds")
            vq.append(tag)
    def dmaK(t): dma(S_K, t, S_KW, f"K{t}")
    def dmaV(t): dma(S_V, t, S_VW, f"V{t}")
    def vwait(tag):
        idx = max(i for i, t in enumerate(vq) if t == tag)
        e(f"s_waitcnt vmcnt({len(vq) - 1 - idx})")
    def qload1(qb, s):
        so = "0" if qb == 0 else f"s{S_T0}"
        if qb and True: e(f"s_mov_b32 s{S_T0}, {qb*16*ROWB}")
        e(f"buffer_load_dwordx4 {vr(QTMP(qb,s))}, v{V_Y}, s[{S_Q}:{S_Q+3}], {so} offen offset:{s*64}" + (" nt" if cfg.qnt else ""))
        vq.append(f"Q{qb}.{s}")
    dmaK(0)
    srd(S_Q, 4, 5, S_T3, 64 * ROWB)
    for s in range(6): qload1(0, s)
    stamp(1, 'pro2')
    srd(S_V, 56, 57, S_T2, HEADB)
    srd(S_O, 58, 59, S_T3, 64 * ROWB)
    e(f"v_and_b32 v{V_T1}, 6, v{V_X0}")
    e(f"v_xor_b32 v{V_T1}, v{V_T1}, v{V_X1}")
    e(f"v_lshlrev_b32 v{V_T1}, 4, v{V_T1}")
    e(f"v_mul_u32_u24 v{V_T2}, {ROWB}, v{V_X0}")
    e(f"v_add_u32 v{V_KA}, v{V_T1}, v{V_T2}")
    if KBASE: e(f"v_add_u32 v{V_KA}, {KBASE}, v{V_KA}")
    e(f"v_xor_b32 v{V_KA+1}, 64, v{V_KA}")
    e(f"v_lshrrev_b32 v{V_T1}, 2, v{V_X0}")
    e(f"v_lshl_add_u32 v{V_T1}, v{V_X1}, 2, v{V_T1}")
    e(f"v_and_b32 v{V_T2}, 6, v{V_T1}")
    e(f"v_bfe_u32 v{V_X2}, v{V_X0}, 1, 1")
    e(f"v_or_b32 v{V_T2}, v{V_T2}, v{V_X2}")
    e(f"v_lshlrev_b32 v{V_T2}, 4, v{V_T2}")
    e(f"v_and_b32 v{V_X2}, 1, v{V_X0}")
    e(f"v_lshl_add_u32 v{V_T2}, v{V_X2}, 3, v{V_T2}")
    e(f"v_mul_u32_u24 v{V_T1}, {ROWB}, v{V_T1}")
    e(f"v_add_u32 v{V_VA}, v{V_T1}, v{V_T2}")
    e(f"v_add_u32 v{V_VA}, {VBASE}, v{V_VA}")
    for j in range(1, 4):
        e(f"v_xor_b32 v{V_VA+j}, {j<<5}, v{V_VA}")
    for i in range(192): e(f"v_accvgpr_write_b32 a{i}, 0")
    for i in range(4): e(f"v_mov_b32 v{V_L+i}, 0")
    e(f"s_mov_b32 s{S_C}, {hex(f2u(CSCALE))}")
    e(f"s_mov_b32 s{S_THR}, {hex(f2u(cfg.THR))}")
    e(f"s_mov_b32 s{S_KOFF}, {NS*TILEB}")
    e(f"s_mov_b32 s{S_VOFF}, {(NS-1)*TILEB}")
    e(f"s_mov_b32 s{S_CNT}, 0")
    stamp(2, 'pro2')
    dmaK(1)
    for s in range(6): qload1(1, s)
    stamp(3, 'pro2')
    vwait("K0")
    e("s_barrier")
    stamp(4, 'pro2')
    def kread(kb, s, stage):
        off = stage * TILEB + kb * 16 * ROWB + (s >> 1) * 128
        return f"ds_read_b128 {vr(KF(kb,s))}, v{V_KA + (s & 1)} offset:{off}"
    def vread(dt, hh, stage, dst=None):
        off = stage * TILEB + hh * 16 * ROWB + (dt >> 2) * 128
        b = (VF(dt % 6) if dst is None else dst) + 2 * hh
        return f"ds_read_b64_tr_b16 v[{b}:{b+1}], v{V_VA + (dt & 3)} offset:{off}"
    for kb in range(2):
        for s in range(6): e(kread(kb, s, 0))
    def xlane(op, x, t):
        e(f"v_mov_b32 v{t}, v{x}")
        e("s_nop 1")
        e(f"v_permlane16_swap_b32 v{x}, v{t}")
        e("s_nop 1")
        e(f"{op} v{x}, v{x}, v{t}")
        e(f"v_mov_b32 v{t}, v{x}")
        e("s_nop 1")
        e(f"v_permlane32_swap_b32 v{x}, v{t}")
        e("s_nop 1")
        e(f"{op} v{x}, v{x}, v{t}")
    def softmax_plain(p, qb):
        vals = [S(p, 0, qb) + i for i in range(4)] + [S(p, 1, qb) + i for i in range(4)]
        lt = V_LT + qb
        for k in range(8): e(f"v_exp_f32 v{V_E+k}, v{vals[k]}")
        e("s_nop 0")
        e(f"v_add_f32 v{lt}, v{V_E}, v{V_E+1}")
        for k in range(2, 8): e(f"v_add_f32 v{lt}, v{lt}, v{V_E+k}")
        for u in range(4):
            e(f"v_cvt_pk_bf16_f32 v{P(p,qb)+u}, v{V_E+2*u}, v{V_E+2*u+1}")
    pend = [[("Q", 2, s)] for s in range(6)] + [[("Q", 3, s)] for s in range(6)]
    ring = [("V", 0)]
    for t in range(2, NS): ring += [("K", t), ("V", t - 1)]
    slots_left = 12
    ringsched = {}
    for n, r in enumerate(ring): ringsched.setdefault(n * 12 // len(ring), []).append(r)
    for k in range(12): pend.append(ringsched.get(k, []))
    def issue(lst):
        for it in lst:
            if it[0] == "Q": qload1(it[1], it[2])
            elif it[0] == "K": dmaK(it[1])
            else: dmaV(it[1])
    def qk0(qb, s):
        for kb in range(2):
            c = "0" if s == 0 else vr(S(0, kb, qb))
            e(f"v_mfma_f32_16x16x32_bf16 {vr(S(0,kb,qb))}, {vr(KF(kb,s))}, {QF(qb,s)}, {c}")
    for qb in range(4):
        for s in range(6):
            issue(pend.pop(0))
            vwait(f"Q{qb}.{s}")
            if s == 0: stamp(2 + qb, 'pro')
            src = QTMP(qb, s); n = qb * 6 + s
            for r in range(4):
                x = src + r
                t0, t1, t2 = V_E + (3 * r) % 6, V_E + (3 * r) % 6 + 1, V_E + (3 * r) % 6 + 2
                e(f"v_and_b32 v{t0}, 0xffff0000, v{x}")
                e(f"v_lshlrev_b32 v{t1}, 16, v{x}")
                e(f"v_mul_f32 v{t0}, s{S_C}, v{t0}")
                e(f"v_mul_f32 v{t1}, s{S_C}, v{t1}")
                if n < 16:
                    e(f"v_cvt_pk_bf16_f32 v{t2}, v{t1}, v{t0}")
                    e(f"v_accvgpr_write_b32 a{192+4*n+r}, v{t2}")
                else:
                    e(f"v_cvt_pk_bf16_f32 v{x}, v{t1}, v{t0}")
                if r == 1 and s > 0:
                    if qb == 0 and s == 1: e("s_waitcnt lgkmcnt(0)")
                    qk0(qb, s - 1)
        e("s_nop 1")
        qk0(qb, 5)
        if qb == 3:
            vwait("K1")
            e("s_barrier")
            for s in range(6): e(kread(0, s, 1 % NS))
        e("s_nop 7")
        e("s_nop 1")
        a = S(0, 0, qb); b = S(0, 1, qb); m = V_X0
        e(f"v_max3_f32 v{m}, v{a}, v{a+1}, v{a+2}")
        e(f"v_max3_f32 v{m}, v{m}, v{a+3}, v{b}")
        e(f"v_max3_f32 v{m}, v{m}, v{b+1}, v{b+2}")
        e(f"v_max_f32 v{m}, v{m}, v{b+3}")
        xlane("v_max_f32", m, V_X1)
        for r in range(4):
            e(f"v_sub_f32 v{NM(qb)+r}, 0, v{m}")
        for r in range(4):
            e(f"v_sub_f32 v{a+r}, v{a+r}, v{m}")
            e(f"v_sub_f32 v{b+r}, v{b+r}, v{m}")
        if qb < 2: softmax_plain(0, qb)
    assert not pend
    e("s_waitcnt lgkmcnt(0)")
    if cfg.stamps:
        e(f"s_memtime s[{S_TS+4}:{S_TS+5}]")
        e("s_waitcnt lgkmcnt(0)")

    VMW = 3 + 6 * (NS - 3)
    fb_sites = {0: [], 1: []}

    def phaseA(u, last):
        p = u % 2
        items = []; pairs = []
        if not last:
            for s in range(6):
                items.append(Item('D', kread(1, s, (u + 1) % NS), pin=2 * s, name=f"K1.{s}"))
            for dt in range(6):
                for hh in range(2):
                    items.append(Item('T', vread(dt, hh, u % NS), pin=24 + 3 * dt, name=f"V{dt}.{hh}"))
        else:
            for dt in range(12):
                dst = VF(dt) if dt < 6 else KF(0, dt - 6)
                for hh in range(2):
                    items.append(Item('T', vread(dt, hh, u % NS, dst), pin=4 + 3 * dt, name=f"V{dt}.{hh}"))
        s2, c2 = softmax_items(p, 2, 0, 20, cfg.edist)
        s3, c3 = softmax_items(p, 3, 20, 40, cfg.edist)
        for k in range(4): pairs.append((k, c2[k]))
        for k in range(4): pairs.append((k, c3[k]))
        link_pairs(pairs)
        items += s2 + s3
        lastA3 = [it for it in s3 if it.name == "A3.7"][0]
        lastA2 = [it for it in s2 if it.name == "A2.7"][0]
        M1 = Item('V', f"v_max3_f32 v{V_X0}, v{V_LT}, v{V_LT+1}, v{V_LT+2}", target=43, deps=[(lastA2, 0)], name="M1")
        M2 = Item('V', f"v_max_f32 v{V_X0}, v{V_X0}, v{V_LT+3}", target=44, deps=[(lastA3, 0), (M1, 0)], name="M2")
        CM = Item('V', f"v_cmp_nge_f32 vcc, s{S_THR}, v{V_X0}", target=45, deps=[(M2, 0)], name="CMP")
        items += [M1, M2, CM]
        light = set() if last else set(cfg.dmaK) | set(cfg.dmaV)
        gaps = schedule(48, items, cfg.look, light)
        assert CM.gap <= 46, CM.gap
        sh = {g: [] for g in range(48)}
        sh[cfg.bar_gap - 1].append(f"s_waitcnt vmcnt({VMW})")
        sh[cfg.bar_gap].append("s_barrier")
        tag = 'L' if last else str(u)
        if not last:
            sh[cfg.dmaK[0] - 2].append(f"s_add_u32 m0, s{S_KW}, {(u % NS)*TILEB}")
            for ii in range(3):
                o = f" offset:{1024*ii}" if ii else ""
                sh[cfg.dmaK[ii]].append(f"buffer_load_dwordx4 v{V_DV+ii}, s[{S_K}:{S_K+3}], s{S_KOFF} offen{o}{KVF} lds")
            sh[cfg.dmaV[0] - 2].append(f"s_add_u32 m0, s{S_VW}, {((u - 1) % NS)*TILEB}")
            for ii in range(3):
                o = f" offset:{1024*ii}" if ii else ""
                sh[cfg.dmaV[ii]].append(f"buffer_load_dwordx4 v{V_DV+ii}, s[{S_V}:{S_V+3}], s{S_VOFF} offen{o}{KVF} lds")
            sh[28].append(f"s_mov_b32 s{S_VOFF}, s{S_KOFF}")
            sh[29].append(f"s_add_u32 s{S_KOFF}, s{S_KOFF}, {TILEB}")
            sh[30].append(f"s_min_u32 s{S_KOFF}, s{S_KOFF}, {(NT-1)*TILEB}")
            sh[23].append("s_waitcnt lgkmcnt(0)")
            if u == U - 2:
                sh[32].append(f"s_add_u32 s{S_CNT}, s{S_CNT}, {U}")
                sh[33].append(f"s_cmp_ge_u32 s{S_CNT}, {NT}")
        sh[46].append("s_waitcnt lgkmcnt(0)")
        sh[47].append(f"s_cbranch_vccnz L_call{tag}")
        for g in range(48):
            assert len(sh[g]) <= 1, (g, sh[g])
            if not last:
                kb, qb, s = g // 24, (g % 24) // 6, g % 6
                d = vr(S(1 - p, kb, qb))
                c = vr(NM(qb)) if s == 0 else d
                e(f"v_mfma_f32_16x16x32_bf16 {d}, {vr(KF(kb,s))}, {QF(qb,s)}, {c}")
            for x in sh[g]: e(x)
            if g == 47: e.lab(f"L_ret{tag}")
            for it in gaps[g]['D'] + gaps[g]['V']: e(it.text)
            if last and any(it.kind == 'E' for it in gaps[g]['V']): e("s_nop 0")
        return gaps

    def phaseB(u):
        p = u % 2
        items = []
        items += [Item('V', f"v_add_f32 v{V_L+q}, v{V_L+q}, v{V_LT+q}", pin=q // 2, name=f"L{q}") for q in range(4)]
        for dt in range(6, 12):
            for hh in range(2):
                items.append(Item('T', vread(dt, hh, u % NS), pin=4 * (dt - 6) + 4, name=f"V{dt}.{hh}"))
        for s in range(6):
            items.append(Item('D', kread(0, s, (u + 2) % NS), pin=26 + 2 * s, name=f"K0.{s}"))
        s0, c0 = softmax_items(1 - p, 0, 2, 23, cfg.edist, earliest=2)
        s1, c1 = softmax_items(1 - p, 1, 23, 44, cfg.edist, earliest=2)
        pairs = [(k, c0[k]) for k in range(4)] + [(k, c1[k]) for k in range(4)]
        link_pairs(pairs)
        items += s0 + s1
        gaps = schedule(48, items, cfg.look)
        sh = {g: [] for g in range(48)}
        order = [(g, it) for g in range(48) for it in gaps[g]['D']]
        def wfor(name, at):
            idx = max(i for i, (g, it) in enumerate(order) if it.name == name)
            assert order[idx][0] < at
            return sum(1 for i, (g, it) in enumerate(order) if i > idx and g < at)
        sh[23].append(f"s_waitcnt lgkmcnt({wfor('V8.1', 23)})")
        sh[35].append(f"s_waitcnt lgkmcnt({wfor('V11.1', 35)})")
        sh[46].append("s_waitcnt lgkmcnt(0)")
        for g in range(48):
            dt, qb = g // 4, g % 4
            e(f"v_mfma_f32_16x16x32_bf16 {ar(O(qb,dt))}, {vr(VF(dt%6))}, {vr(P(p,qb))}, {ar(O(qb,dt))}")
            for x in sh[g]: e(x)
            for it in gaps[g]['D'] + gaps[g]['V']: e(it.text)
            if g == 47:
                if u == U - 2: e("s_cbranch_scc1 L_tail")
                if u == U - 1: e("s_branch L_loop")
        return gaps

    def fallback(p, tag, last):
        e.lab(f"L_fb{tag}")
        e("s_nop 7"); e("s_nop 7")
        for qb in range(4):
            a = S(p, 0, qb); b = S(p, 1, qb); m = V_X0
            e(f"v_max3_f32 v{m}, v{a}, v{a+1}, v{a+2}")
            e(f"v_max3_f32 v{m}, v{m}, v{a+3}, v{b}")
            e(f"v_max3_f32 v{m}, v{m}, v{b+1}, v{b+2}")
            e(f"v_max_f32 v{m}, v{m}, v{b+3}")
            xlane("v_max_f32", m, V_X1)
            e(f"v_max_f32 v{m}, 0, v{m}")
            for r in range(4):
                e(f"v_sub_f32 v{NM(qb)+r}, v{NM(qb)+r}, v{m}")
                e(f"v_sub_f32 v{a+r}, v{a+r}, v{m}")
                e(f"v_sub_f32 v{b+r}, v{b+r}, v{m}")
                if not last:
                    e(f"v_sub_f32 v{S(1-p,0,qb)+r}, v{S(1-p,0,qb)+r}, v{m}")
                    e(f"v_sub_f32 v{S(1-p,1,qb)+r}, v{S(1-p,1,qb)+r}, v{m}")
            e(f"v_sub_f32 v{V_X1}, 0, v{m}")
            e(f"v_exp_f32 v{V_X1}, v{V_X1}")
            e("s_nop 0")
            e(f"v_mul_f32 v{V_L+qb}, v{V_L+qb}, v{V_X1}")
            for dt in range(12):
                for r in range(4):
                    e(f"v_accvgpr_read_b32 v{V_X2}, a{O(qb,dt)+r}")
                    e(f"v_mul_f32 v{V_X2}, v{V_X2}, v{V_X1}")
                    e(f"v_accvgpr_write_b32 a{O(qb,dt)+r}, v{V_X2}")
            softmax_plain(p, qb)
        e("s_nop 3")

    def filt(t):
        a = cfg.abl
        if 'nodma' in a and t.startswith('buffer_load'): return True
        if 'nods' in a and t.startswith('ds_read'): return True
        if 'noexp' in a and t.startswith('v_exp'): return True
        if 'noadd' in a and t.startswith('v_add_f32'): return True
        if 'nocvt' in a and t.startswith('v_cvt_pk'): return True
        if 'nobar' in a and t.startswith('s_barrier'): return True
        if 'nochk' in a and (t.startswith('v_max') or t.startswith('v_cmp') or t.startswith('s_cbranch_vcc')): return True
        return False
    e(".p2align 6")
    e.lab("L_loop")
    e.filt = filt if cfg.abl else None
    info = {}
    for u in range(U):
        info[f"A{u}"] = phaseA(u, False)
        info[f"B{u}"] = phaseB(u)
    e.filt = None
    e.lab("L_tail")
    phaseA(U - 1, True)
    if cfg.stamps:
        e(f"s_memtime s[{S_TS+6}:{S_TS+7}]")
    pl = (U - 1) % 2
    for qb in range(4):
        e(f"v_add_f32 v{V_L+qb}, v{V_L+qb}, v{V_LT+qb}")
    def pv_last(qb, dt):
        vf = VF(dt) if dt < 6 else KF(0, dt - 6)
        return f"v_mfma_f32_16x16x32_bf16 {ar(O(qb,dt))}, {vr(vf)}, {vr(P(pl,qb))}, {ar(O(qb,dt))}"
    for dt in range(12): e(pv_last(0, dt))
    for qb in range(4):
        xlane("v_add_f32", V_L + qb, V_X1)
        e(f"v_rcp_f32 v{V_L+qb}, v{V_L+qb}")
    e(f"v_and_b32 v{V_X0}, 15, v0")
    e(f"v_bfe_u32 v{V_X1}, v0, 4, 2")
    e(f"v_mul_u32_u24 v{V_T0}, {OPAD}, v{V_X0}")
    e(f"v_lshl_add_u32 v{V_T0}, v{V_X1}, 3, v{V_T0}")
    e(f"s_mul_i32 s{S_T0}, s{S_W}, {2*16*OPAD}")
    e(f"s_add_u32 s{S_T0}, s{S_T0}, {OBASE}")
    e(f"v_add_u32 v{V_T0}, s{S_T0}, v{V_T0}")
    e(f"v_and_b32 v{V_X0}, 63, v0")
    e(f"v_lshlrev_b32 v{V_T1}, 4, v{V_X0}")
    for n in range(3):
        r_ = V_KA + n
        e(f"v_add_u32 v{V_X1}, {64*n}, v{V_X0}")
        e(f"v_mul_u32_u24 v{V_X2}, 2731, v{V_X1}")
        e(f"v_lshrrev_b32 v{V_X2}, 16, v{V_X2}")
        e(f"v_add_u32 v{V_X1}, v{V_X1}, v{V_X2}")
        e(f"v_lshlrev_b32 v{r_}, 4, v{V_X1}")
        e(f"v_add_u32 v{r_}, s{S_T0}, v{r_}")
    def epi_items(qb):
        L = []
        boff = (qb % 2) * 16 * OPAD
        tb = V_S + (qb % 2) * 32
        for dt in range(12):
            t = tb + (dt % 4) * 6
            for r in range(4): L.append(f"v_accvgpr_read_b32 v{t+r}, a{O(qb,dt)+r}")
            for r in range(4): L.append(f"v_mul_f32 v{t+r}, v{t+r}, v{V_L+qb}")
            L.append(f"v_cvt_pk_bf16_f32 v{t+4}, v{t}, v{t+1}")
            L.append(f"v_cvt_pk_bf16_f32 v{t+5}, v{t+2}, v{t+3}")
            L.append(f"ds_write_b64 v{V_T0}, v[{t+4}:{t+5}] offset:{boff + dt*32}")
        L.append("s_waitcnt lgkmcnt(0)")
        rb = V_P + (qb % 2) * 0
        rb = V_V if qb == 3 else V_Q + (qb % 2) * 0
        rb = V_Q if qb % 2 == 0 else V_NM
        regs = [V_Q + 4 * k for k in range(6)] if qb % 2 == 0 else [V_NM, V_NM + 4, V_NM + 8, V_NM + 12, V_Q + 24, V_Q + 28]
        for n in range(6):
            L.append(f"ds_read_b128 {vr(regs[n])}, v{V_KA + n % 3} offset:{boff + (n // 3) * 8 * OPAD}")
        for n in range(6):
            L.append(f"s_waitcnt lgkmcnt({5-n})")
            L.append(f"s_mov_b32 s{S_T1}, {qb*16*ROWB + (n // 3) * 3072}")
            o = (n % 3) * 1024
            L.append(f"buffer_store_dwordx4 {vr(regs[n])}, v{V_T1}, s[{S_O}:{S_O+3}], s{S_T1} offen offset:{o}" + (" nt" if cfg.ont else ""))
        return L
    for qb in range(4):
        L = epi_items(qb)
        m = [pv_last(qb + 1, dt) for dt in range(12)] if qb < 3 else []
        step = max(1, (len(L) - 20) // 12)
        k = 0
        for n, ins in enumerate(L):
            if m and n % step == 0:
                e(m.pop(0))
            e(ins)
        for x in m: e(x)
        if qb < 3: e("s_nop 7")
    if cfg.stamps:
        e("s_waitcnt vmcnt(0)")
        e(f"s_memtime s[{S_TS+8}:{S_TS+9}]")
        e(f"s_memrealtime s[{S_TS+10}:{S_TS+11}]")
        e("s_waitcnt lgkmcnt(0)")
        e(f"s_mov_b32 s{S_WS}, s60"); e(f"s_mov_b32 s{S_WS+1}, s61"); e(f"s_mov_b32 s{S_WS+2}, 0x100000"); e(f"s_mov_b32 s{S_WS+3}, 0x20000")
        e(f"s_sub_u32 s{S_T0}, s{S_TS+8}, s{S_TS}"); e(f"v_mov_b32 v2, s{S_T0}")
        e(f"s_sub_u32 s{S_T0}, s{S_TS+10}, s{S_TS+2}"); e(f"v_mov_b32 v3, s{S_T0}")
        if cfg.stamps in ('pro', 'pro2'):
            for k in range(6):
                e(f"s_sub_u32 s{S_T0}, s{76+2*k}, s{S_TS}"); e(f"v_mov_b32 v{4+k}, s{S_T0}")
        else:
            e(f"s_sub_u32 s{S_T0}, s{S_TS+4}, s{S_TS}"); e(f"v_mov_b32 v4, s{S_T0}")
            e(f"s_sub_u32 s{S_T0}, s{S_TS+6}, s{S_TS+4}"); e(f"v_mov_b32 v5, s{S_T0}")
            e(f"s_sub_u32 s{S_T0}, s{S_TS+8}, s{S_TS+6}"); e(f"v_mov_b32 v6, s{S_T0}")
            for j in (7, 8, 9): e(f"v_mov_b32 v{j}, 0")
        e("s_lshl_b32 s3, s2, 5")
        e("v_mov_b32 v10, s3")
        e("v_cmp_eq_u32 vcc, 0, v0")
        e("s_and_saveexec_b64 s[62:63], vcc")
        e("s_cbranch_execz L_end")
        e(f"buffer_store_dwordx4 v[2:5], v10, s[{S_WS}:{S_WS+3}], 0 offen")
        e(f"buffer_store_dwordx4 v[6:9], v10, s[{S_WS}:{S_WS+3}], 0 offen offset:16")
    e.lab("L_end")
    e("s_endpgm")
    for u in range(U):
        e.lab(f"L_call{u}")
        e(f"s_mov_b32 s{S_RET}, {u}")
        e(f"s_branch L_fb{u % 2}")
    e.lab("L_callL")
    e("s_branch L_fbL")
    for p in range(2):
        fallback(p, str(p), False)
        sites = [u for u in range(U) if u % 2 == p]
        for u in sites[:-1]:
            e(f"s_cmp_eq_u32 s{S_RET}, {u}")
            e(f"s_cbranch_scc1 L_retx{u}")
        e(f"s_branch L_retx{sites[-1]}")
    for u in range(U):
        e.lab(f"L_retx{u}")
        if u == U - 2: e(f"s_cmp_ge_u32 s{S_CNT}, {NT}")
        e(f"s_branch L_ret{u}")
    fallback(pl, "L", True)
    e("s_branch L_retL")
    e.raw('.section .rodata,"a"')
    e.raw(".p2align 6")
    e.raw(f".amdhsa_kernel {KNAME}")
    e.raw("  .amdhsa_next_free_vgpr 512")
    e.raw("  .amdhsa_next_free_sgpr 96")
    e.raw("  .amdhsa_accum_offset 256")
    e.raw("  .amdhsa_group_segment_fixed_size 0")
    e.raw("  .amdhsa_kernarg_size 48")
    e.raw("  .amdhsa_user_sgpr_count 2")
    e.raw("  .amdhsa_user_sgpr_kernarg_segment_ptr 1")
    e.raw("  .amdhsa_system_sgpr_workgroup_id_x 1")
    e.raw(".end_amdhsa_kernel")
    return e.text(), info

def show(gaps, tag):
    print(tag)
    for g, x in enumerate(gaps):
        print(f"  {g:2d}: " + " | ".join(it.name for it in x['D'] + x['V']))

if __name__ == "__main__":
    import argparse
    ap = argparse.ArgumentParser()
    ap.add_argument("-o", default="standalone__gqa_softmax__prompt.s")
    ap.add_argument("--stamps", default="")
    ap.add_argument("--show", action="store_true")
    ap.add_argument("--set", nargs="*", default=[], help="cfg overrides k=v")
    a = ap.parse_args()
    cfg = Cfg(stamps=a.stamps)
    for kv in a.set:
        k, v = kv.split("=", 1)
        setattr(cfg, k, eval(v))
    txt, info = gen(cfg)
    open(a.o, "w").write(txt)
    if a.show:
        show(info['A0'], "phase A"); show(info['B0'], "phase B")
    print("wrote", a.o, len(txt), "bytes")
```

```python
import sys, math, struct

KNAME = "standalone__gqa_softmax__prompt_kernel"
H, SEQ, D = 32, 2048, 192
ROWB = D * 2
TILE = 32
TILEB = TILE * ROWB
NT = SEQ // TILE
HEADB = SEQ * ROWB
CSCALE = math.log2(math.e) / math.sqrt(D)
OPAD = 400
def f2u(x): return struct.unpack('<I', struct.pack('<f', x))[0]

class Cfg:
    NS = 4
    THR = 65536.0
    stamps = ""
    qnt = True
    kvnt = False
    ont = False
    abl = ()
    edist = 2
    look = 2
    dmaK = (4, 8, 12)
    dmaV = (16, 20, 26)
    bar_gap = 1
    qlds = True
    otouch = True
    zmfma = True
    cwarm = True
    def __init__(self, **kw):
        for k, v in kw.items(): setattr(self, k, v)

V_T0, V_T1, V_T2 = 1, 2, 3
V_L = 4
V_LT = 8
V_E = 12
V_KA = 20
V_VA = 22
V_DV = 26
V_X0, V_X1, V_X2 = 29, 30, 31
V_S = 32
V_P = 96
V_NM = 128
V_K = 144
V_V = 192
V_Q = 216
V_Y = 248

E_WA, E_SO = 1, 2
E_RA = (3, 253, 254)

def S(p, kb, qb): return V_S + p * 32 + (kb * 4 + qb) * 4
def P(p, qb): return V_P + p * 16 + qb * 4
def NM(qb): return V_NM + qb * 4
def KF(kb, s): return V_K + (kb * 6 + s) * 4
def VF(j): return V_V + j * 4
def vr(b, n=4): return f"v[{b}:{b+n-1}]"
def ar(b, n=4): return f"a[{b}:{b+n-1}]"
def O(qb, dt): return (qb * 12 + dt) * 4
def QF(qb, s):
    n = qb * 6 + s
    return ar(192 + 4 * n) if n < 16 else vr(V_Q + 4 * (n - 16))
def QTMP(qb, s):
    n = qb * 6 + s
    if n < 8: return V_S + 32 + 4 * n
    if n < 14: return V_V + 4 * (n - 8)
    if n < 16: return V_P + 16 + 4 * (n - 14)
    return V_Q + 4 * (n - 16)

S_K, S_V, S_O, S_Q = 8, 12, 16, 20
S_W = 24
S_KOFF = 25
S_VOFF = 26
S_CNT = 31
S_THR = 34
S_KW = 35
S_VW = 36
S_RET = 37
S_QW = 38
S_T0, S_T1, S_T2, S_T3 = 40, 41, 42, 43
S_C = 44
S_WS = 48
S_TS = 64

class Emit:
    def __init__(self): self.l = []; self.filt = None
    def __call__(self, s):
        if self.filt and self.filt(s): return
        self.l.append("    " + s)
    def lab(self, s): self.l.append(s + ":")
    def raw(self, s): self.l.append(s)
    def text(self): return "\n".join(self.l) + "\n"

class Item:
    def __init__(self, kind, text, target=0, earliest=0, pin=None, deps=(), name=""):
        self.kind = kind; self.text = text; self.target = target; self.earliest = earliest; self.pin = pin
        self.deps = list(deps); self.gap = None; self.name = name

def schedule(ngaps, items, look=2, light=()):
    gaps = [dict(D=[], V=[]) for _ in range(ngaps)]
    def cap(g):
        c = 1 if g in light else 2
        for it in gaps[g]['D'] + gaps[g]['V']:
            c -= 2 if it.kind == 'E' else 1
        return c
    for it in items:
        if it.pin is not None:
            g = gaps[it.pin]
            (g['D'] if it.kind in 'DT' else g['V']).append(it)
            it.gap = it.pin
    for g in range(ngaps):
        nD = [x.kind for x in gaps[g]['D']]
        assert nD.count('D') <= 1 and not ('D' in nD and 'T' in nD), (g, nD)
    rest = [it for it in items if it.pin is None]
    for g in range(ngaps):
        while True:
            c = cap(g)
            if c <= 0: break
            cands = []
            for it in rest:
                if it.gap is not None or it.earliest > g or it.target > g + look: continue
                if any(d.gap is None or d.gap + dist > g for d, dist in it.deps): continue
                if it.kind == 'E' and c < 2: continue
                cands.append(it)
            if not cands: break
            cands.sort(key=lambda x: x.target)
            it = cands[0]
            it.gap = g
            gaps[g]['V'].append(it)
    left = [it for it in rest if it.gap is None]
    assert not left, "unplaced: " + ", ".join(x.name for x in left)
    return gaps

def softmax_items(p, qb, t0, t1, edist, earliest=0):
    vals = [S(p, 0, qb) + i for i in range(4)] + [S(p, 1, qb) + i for i in range(4)]
    lt = V_LT + qb
    seq = []; prev_add = None; cons = {}
    for u in range(4):
        e0, e1 = V_E + 2 * u, V_E + 2 * u + 1
        E0 = Item('E', f"v_exp_f32 v{e0}, v{vals[2*u]}", name=f"E{qb}.{2*u}")
        E1 = Item('E', f"v_exp_f32 v{e1}, v{vals[2*u+1]}", name=f"E{qb}.{2*u+1}", deps=[(E0, 1)])
        if u == 0:
            A = [Item('V', f"v_add_f32 v{lt}, v{e0}, v{e1}", name=f"A{qb}.01", deps=[(E0, edist), (E1, edist)])]
        else:
            A0 = Item('V', f"v_add_f32 v{lt}, v{lt}, v{e0}", name=f"A{qb}.{2*u}", deps=[(E0, edist), (prev_add, 0)])
            A1 = Item('V', f"v_add_f32 v{lt}, v{lt}, v{e1}", name=f"A{qb}.{2*u+1}", deps=[(E1, edist), (A0, 0)])
            A = [A0, A1]
        prev_add = A[-1]
        C = Item('V', f"v_cvt_pk_bf16_f32 v{P(p,qb)+u}, v{e0}, v{e1}", name=f"C{qb}.{u}", deps=[(E0, edist), (E1, edist)])
        seq += [E0, E1] + A + [C]
        cons[u] = (E0, E1, A, C)
    tot = sum(2 if it.kind == 'E' else 1 for it in seq)
    acc = 0
    for it in seq:
        it.target = t0 + (t1 - t0) * acc / tot
        it.earliest = earliest
        acc += 2 if it.kind == 'E' else 1
    return seq, cons

def link_pairs(allpairs):
    last = {}
    for pr, (E0, E1, A, C) in allpairs:
        if pr in last:
            pA, pC = last[pr]
            for a in pA: E0.deps.append((a, 0))
            E0.deps.append((pC, 0))
        last[pr] = (A, C)

def gen(cfg):
    NS = cfg.NS; U = NS
    assert U % 2 == 0 and NT % U == 0
    KBASE = 0
    VBASE = NS * TILEB
    OBASE = 2 * NS * TILEB
    LDS = OBASE + 4 * 2 * 16 * OPAD
    assert LDS <= 163840
    e = Emit()
    e.raw(f"; @launch grid=(256,1,1) block=(256,1,1) lds={LDS}")
    e.raw('.amdgcn_target "amdgcn-amd-amdhsa--gfx950"')
    e.raw(".text")
    e.raw(f".globl {KNAME}")
    e.raw(".p2align 8")
    e.raw(f".type {KNAME},@function")
    e.lab(KNAME)
    def stamp(k, mode):
        if cfg.stamps == mode: e(f"s_memtime s[{76+2*k}:{77+2*k}]")
    KVF = " nt" if cfg.kvnt else ""
    e("s_cmp_ge_u32 s2, 256")
    e("s_cbranch_scc1 L_end")
    e("s_load_dwordx4 s[4:7], s[0:1], 0")
    e("s_load_dwordx4 s[56:59], s[0:1], 16")
    if cfg.stamps:
        e("s_load_dwordx2 s[60:61], s[0:1], 40")
        e(f"s_memtime s[{S_TS}:{S_TS+1}]")
        e(f"s_memrealtime s[{S_TS+2}:{S_TS+3}]")
    if cfg.cwarm:
        e("s_getpc_b64 s[46:47]")
        e(f"v_lshlrev_b32 v{V_Y+6}, 7, v0")
        e(f"v_min_u32 v{V_Y+6}, L_end-{KNAME}-16, v{V_Y+6}")
        e(f"global_load_dword v{V_Y+7}, v{V_Y+6}, s[46:47]")
        cw = True
    e(f"v_and_b32 v{V_T0}, 63, v0")
    e(f"v_lshrrev_b32 v{V_T1}, 6, v0")
    e(f"v_and_b32 v{V_X0}, 15, v0")
    e(f"v_readfirstlane_b32 s{S_W}, v{V_T1}")
    e(f"v_lshrrev_b32 v{V_X1}, 4, v{V_T0}")
    e(f"s_and_b32 s{S_T0}, s2, 7")
    e(f"s_lshl_b32 s{S_T0}, s{S_T0}, 2")
    e(f"s_lshr_b32 s{S_T1}, s2, 6")
    e(f"s_add_u32 s{S_T0}, s{S_T0}, s{S_T1}")
    e(f"s_lshr_b32 s{S_T1}, s2, 3")
    e(f"s_and_b32 s{S_T1}, s{S_T1}, 7")
    e(f"s_mul_i32 s{S_T2}, s{S_T0}, {HEADB}")
    e(f"s_mul_i32 s{S_T3}, s{S_T1}, {256*ROWB}")
    e(f"s_mul_i32 s{S_T1}, s{S_W}, {64*ROWB}")
    e(f"s_add_u32 s{S_T3}, s{S_T3}, s{S_T1}")
    e(f"s_add_u32 s{S_T3}, s{S_T3}, s{S_T2}")
    e(f"s_mul_i32 s{S_T1}, s{S_W}, 192")
    for ii in range(3):
        e(f"v_add_u32 v{V_T1}, s{S_T1}, v{V_T0}")
        if ii: e(f"v_add_u32 v{V_T1}, {64*ii}, v{V_T1}")
        e(f"v_mul_u32_u24 v{V_T2}, 2731, v{V_T1}")
        e(f"v_lshrrev_b32 v{V_T2}, 16, v{V_T2}")
        e(f"v_mul_u32_u24 v{V_X2}, 24, v{V_T2}")
        e(f"v_sub_u32 v{V_T1}, v{V_T1}, v{V_X2}")
        e(f"v_and_b32 v{V_X2}, 6, v{V_T2}")
        e(f"v_xor_b32 v{V_T1}, v{V_T1}, v{V_X2}")
        e(f"v_lshlrev_b32 v{V_T1}, 4, v{V_T1}")
        e(f"v_mul_u32_u24 v{V_T2}, {ROWB}, v{V_T2}")
        e(f"v_add_u32 v{V_DV+ii}, v{V_T1}, v{V_T2}")
        if ii: e(f"v_subrev_u32 v{V_DV+ii}, {1024*ii}, v{V_DV+ii}")
    if cfg.qlds:
        e(f"s_mul_i32 s{S_T1}, s{S_W}, 3072")
        for ii in range(3): e(f"v_subrev_u32 v{V_Y+ii}, s{S_T1}, v{V_DV+ii}")
        e(f"s_mul_i32 s{S_QW}, s{S_W}, {2*16*OPAD}")
        e(f"s_add_u32 s{S_QW}, s{S_QW}, {OBASE}")
    else:
        e(f"v_mul_u32_u24 v{V_Y}, {ROWB}, v{V_X0}")
        e(f"v_lshl_add_u32 v{V_Y}, v{V_X1}, 4, v{V_Y}")
    e(f"s_mul_i32 s{S_T1}, s{S_W}, 3072")
    e(f"s_add_u32 s{S_KW}, s{S_T1}, {KBASE}")
    e(f"s_add_u32 s{S_VW}, s{S_T1}, {VBASE}")
    e("s_waitcnt lgkmcnt(0)")
    stamp(0, 'pro2')
    def srd(sr, lo, hi, off, nrec):
        e(f"s_add_u32 s{sr}, s{lo}, s{off}")
        e(f"s_addc_u32 s{sr+1}, s{hi}, 0")
        e(f"s_mov_b32 s{sr+2}, {nrec}")
        e(f"s_mov_b32 s{sr+3}, 0x20000")
    srd(S_K, 6, 7, S_T2, HEADB)
    vq = ["CW"] if cfg.cwarm else []
    def dma(srd_, t, wreg, tag):
        e(f"s_mov_b32 s{S_T1}, {t*TILEB}")
        e(f"s_add_u32 m0, s{wreg}, {(t % NS)*TILEB}")
        e("s_nop 0")
        for ii in range(3):
            o = f" offset:{1024*ii}" if ii else ""
            e(f"buffer_load_dwordx4 v{V_DV+ii}, s[{srd_}:{srd_+3}], s{S_T1} offen{o}{KVF} lds")
            vq.append(tag)
    def dmaK(t): dma(S_K, t, S_KW, f"K{t}")
    def dmaV(t): dma(S_V, t, S_VW, f"V{t}")
    def vwait(tag):
        idx = max(i for i, t in enumerate(vq) if t == tag)
        e(f"s_waitcnt vmcnt({len(vq) - 1 - idx})")
    QNT = " nt" if cfg.qnt else ""
    def qload1(qb, s):
        if cfg.qlds:
            half, ii = s // 3, s % 3
            if ii == 0:
                e(f"s_mov_b32 s{S_T0}, {qb*16*ROWB + half*3072}")
                e(f"s_add_u32 m0, s{S_QW}, {(qb % 2)*16*OPAD + half*3072}")
                e("s_nop 0")
            o = f" offset:{1024*ii}" if ii else ""
            e(f"buffer_load_dwordx4 v{V_Y+ii}, s[{S_Q}:{S_Q+3}], s{S_T0} offen{o}{QNT} lds")
            vq.append(f"Q{qb}.{s}")
            return
        so = "0" if qb == 0 else f"s{S_T0}"
        if qb and True: e(f"s_mov_b32 s{S_T0}, {qb*16*ROWB}")
        e(f"buffer_load_dwordx4 {vr(QTMP(qb,s))}, v{V_Y}, s[{S_Q}:{S_Q+3}], {so} offen offset:{s*64}" + QNT)
        vq.append(f"Q{qb}.{s}")
    dmaK(0)
    srd(S_Q, 4, 5, S_T3, 64 * ROWB)
    for s in range(6): qload1(0, s)
    stamp(1, 'pro2')
    srd(S_V, 56, 57, S_T2, HEADB)
    srd(S_O, 58, 59, S_T3, 64 * ROWB)
    e(f"v_and_b32 v{V_T1}, 6, v{V_X0}")
    e(f"v_xor_b32 v{V_T1}, v{V_T1}, v{V_X1}")
    e(f"v_lshlrev_b32 v{V_T1}, 4, v{V_T1}")
    e(f"v_mul_u32_u24 v{V_T2}, {ROWB}, v{V_X0}")
    e(f"v_add_u32 v{V_KA}, v{V_T1}, v{V_T2}")
    if KBASE: e(f"v_add_u32 v{V_KA}, {KBASE}, v{V_KA}")
    e(f"v_xor_b32 v{V_KA+1}, 64, v{V_KA}")
    e(f"v_lshrrev_b32 v{V_T1}, 2, v{V_X0}")
    e(f"v_lshl_add_u32 v{V_T1}, v{V_X1}, 2, v{V_T1}")
    e(f"v_and_b32 v{V_T2}, 6, v{V_T1}")
    e(f"v_bfe_u32 v{V_X2}, v{V_X0}, 1, 1")
    e(f"v_or_b32 v{V_T2}, v{V_T2}, v{V_X2}")
    e(f"v_lshlrev_b32 v{V_T2}, 4, v{V_T2}")
    e(f"v_and_b32 v{V_X2}, 1, v{V_X0}")
    e(f"v_lshl_add_u32 v{V_T2}, v{V_X2}, 3, v{V_T2}")
    e(f"v_mul_u32_u24 v{V_T1}, {ROWB}, v{V_T1}")
    e(f"v_add_u32 v{V_VA}, v{V_T1}, v{V_T2}")
    e(f"v_add_u32 v{V_VA}, {VBASE}, v{V_VA}")
    for j in range(1, 4):
        e(f"v_xor_b32 v{V_VA+j}, {j<<5}, v{V_VA}")
    if cfg.otouch:
        e(f"buffer_load_dword v{V_Y+7}, off, s[{S_O}:{S_O+3}], 0")
        vq.append("OT")
    if cfg.qlds:
        e(f"v_add_u32 v{V_Y+3}, s{S_QW}, v{V_KA}")
        e(f"v_add_u32 v{V_Y+4}, s{S_QW}, v{V_KA+1}")
    e(f"s_mul_i32 s{S_T0}, s{S_W}, {2*16*OPAD}")
    e(f"s_add_u32 s{S_T0}, s{S_T0}, {OBASE}")
    e(f"v_mul_u32_u24 v{E_WA}, {OPAD}, v{V_X0}")
    e(f"v_lshl_add_u32 v{E_WA}, v{V_X1}, 3, v{E_WA}")
    e(f"v_add_u32 v{E_WA}, s{S_T0}, v{E_WA}")
    e(f"v_and_b32 v{V_X0}, 63, v0")
    e(f"v_lshlrev_b32 v{E_SO}, 4, v{V_X0}")
    for n in range(3):
        e(f"v_add_u32 v{V_X1}, {64*n}, v{V_X0}")
        e(f"v_mul_u32_u24 v{V_X2}, 2731, v{V_X1}")
        e(f"v_lshrrev_b32 v{V_X2}, 16, v{V_X2}")
        e(f"v_add_u32 v{V_X1}, v{V_X1}, v{V_X2}")
        e(f"v_lshlrev_b32 v{E_RA[n]}, 4, v{V_X1}")
        e(f"v_add_u32 v{E_RA[n]}, s{S_T0}, v{E_RA[n]}")
    if cfg.zmfma:
        for i in range(4): e(f"v_mov_b32 v{V_E+i}, 0")
        e("s_nop 1")
        for i in range(12): e(f"v_mfma_f32_32x32x16_bf16 a[{16*i}:{16*i+15}], {vr(V_E)}, {vr(V_E)}, 0")
    else:
        for i in range(192): e(f"v_accvgpr_write_b32 a{i}, 0")
    for i in range(4): e(f"v_mov_b32 v{V_L+i}, 0")
    e(f"s_mov_b32 s{S_C}, {hex(f2u(CSCALE))}")
    e(f"s_mov_b32 s{S_THR}, {hex(f2u(cfg.THR))}")
    e(f"s_mov_b32 s{S_KOFF}, {NS*TILEB}")
    e(f"s_mov_b32 s{S_VOFF}, {(NS-1)*TILEB}")
    e(f"s_mov_b32 s{S_CNT}, 0")
    stamp(2, 'pro2')
    dmaK(1)
    for s in range(6): qload1(1, s)
    stamp(3, 'pro2')
    vwait("K0")
    e("s_barrier")
    stamp(4, 'pro2')
    def kread(kb, s, stage):
        off = stage * TILEB + kb * 16 * ROWB + (s >> 1) * 128
        return f"ds_read_b128 {vr(KF(kb,s))}, v{V_KA + (s & 1)} offset:{off}"
    def vread(dt, hh, stage, dst=None):
        off = stage * TILEB + hh * 16 * ROWB + (dt >> 2) * 128
        b = (VF(dt % 6) if dst is None else dst) + 2 * hh
        return f"ds_read_b64_tr_b16 v[{b}:{b+1}], v{V_VA + (dt & 3)} offset:{off}"
    for kb in range(2):
        for s in range(6): e(kread(kb, s, 0))
    def xlane(op, x, t):
        e(f"v_mov_b32 v{t}, v{x}")
        e("s_nop 1")
        e(f"v_permlane16_swap_b32 v{x}, v{t}")
        e("s_nop 1")
        e(f"{op} v{x}, v{x}, v{t}")
        e(f"v_mov_b32 v{t}, v{x}")
        e("s_nop 1")
        e(f"v_permlane32_swap_b32 v{x}, v{t}")
        e("s_nop 1")
        e(f"{op} v{x}, v{x}, v{t}")
    def softmax_plain(p, qb):
        vals = [S(p, 0, qb) + i for i in range(4)] + [S(p, 1, qb) + i for i in range(4)]
        lt = V_LT + qb
        for k in range(8): e(f"v_exp_f32 v{V_E+k}, v{vals[k]}")
        e("s_nop 0")
        e(f"v_add_f32 v{lt}, v{V_E}, v{V_E+1}")
        for k in range(2, 8): e(f"v_add_f32 v{lt}, v{lt}, v{V_E+k}")
        for u in range(4):
            e(f"v_cvt_pk_bf16_f32 v{P(p,qb)+u}, v{V_E+2*u}, v{V_E+2*u+1}")
    ring = [("V", 0)]
    for t in range(2, NS): ring += [("K", t), ("V", t - 1)]
    pend = [[("Q", 2, s)] for s in range(6)] + [[("Q", 3, s)] for s in range(6)]
    ringsched = {}
    for n, r in enumerate(ring): ringsched.setdefault(n * 12 // len(ring), []).append(r)
    for k in range(12): pend.append(ringsched.get(k, []))
    def issue(lst):
        for it in lst:
            if it[0] == "Q": qload1(it[1], it[2])
            elif it[0] == "K": dmaK(it[1])
            else: dmaV(it[1])
    def qk0(qb, s):
        for kb in range(2):
            c = "0" if s == 0 else vr(S(0, kb, qb))
            e(f"v_mfma_f32_16x16x32_bf16 {vr(S(0,kb,qb))}, {vr(KF(kb,s))}, {QF(qb,s)}, {c}")
    for qb in range(4):
        if qb == 2:
            vwait("K1")
            e("s_barrier")
        if cfg.qlds:
            vwait(f"Q{qb}.5")
            stamp(2 + qb, 'pro')
            for s in range(6):
                off = (qb % 2) * 16 * OPAD + (s >> 1) * 128
                e(f"ds_read_b128 {vr(QTMP(qb,s))}, v{V_Y + 3 + (s & 1)} offset:{off}")
            e("s_waitcnt lgkmcnt(0)")
        for s in range(6):
            issue(pend.pop(0))
            if not cfg.qlds:
                vwait(f"Q{qb}.{s}")
                if s == 0: stamp(2 + qb, 'pro')
            src = QTMP(qb, s); n = qb * 6 + s
            for r in range(4):
                x = src + r
                t0, t1, t2 = V_E + (3 * r) % 6, V_E + (3 * r) % 6 + 1, V_E + (3 * r) % 6 + 2
                e(f"v_and_b32 v{t0}, 0xffff0000, v{x}")
                e(f"v_lshlrev_b32 v{t1}, 16, v{x}")
                e(f"v_mul_f32 v{t0}, s{S_C}, v{t0}")
                e(f"v_mul_f32 v{t1}, s{S_C}, v{t1}")
                if n < 16:
                    e(f"v_cvt_pk_bf16_f32 v{t2}, v{t1}, v{t0}")
                    e(f"v_accvgpr_write_b32 a{192+4*n+r}, v{t2}")
                else:
                    e(f"v_cvt_pk_bf16_f32 v{x}, v{t1}, v{t0}")
                if r == 1 and s > 0:
                    if qb == 0 and s == 1: e("s_waitcnt lgkmcnt(0)")
                    qk0(qb, s - 1)
        e("s_nop 1")
        qk0(qb, 5)
        if qb == 3:
            for s in range(6): e(kread(0, s, 1 % NS))
        e("s_nop 7")
        e("s_nop 1")
        a = S(0, 0, qb); b = S(0, 1, qb); m = V_X0
        e(f"v_max3_f32 v{m}, v{a}, v{a+1}, v{a+2}")
        e(f"v_max3_f32 v{m}, v{m}, v{a+3}, v{b}")
        e(f"v_max3_f32 v{m}, v{m}, v{b+1}, v{b+2}")
        e(f"v_max_f32 v{m}, v{m}, v{b+3}")
        xlane("v_max_f32", m, V_X1)
        for r in range(4):
            e(f"v_sub_f32 v{NM(qb)+r}, 0, v{m}")
        for r in range(4):
            e(f"v_sub_f32 v{a+r}, v{a+r}, v{m}")
            e(f"v_sub_f32 v{b+r}, v{b+r}, v{m}")
        if qb < 2: softmax_plain(0, qb)
    assert not pend
    e("s_waitcnt lgkmcnt(0)")
    if cfg.stamps:
        e(f"s_memtime s[{S_TS+4}:{S_TS+5}]")
        e("s_waitcnt lgkmcnt(0)")

    VMW = 3 + 6 * (NS - 3)
    fb_sites = {0: [], 1: []}

    def phaseA(u, last):
        p = u % 2
        items = []; pairs = []
        if not last:
            for s in range(6):
                items.append(Item('D', kread(1, s, (u + 1) % NS), pin=2 * s, name=f"K1.{s}"))
            for dt in range(6):
                for hh in range(2):
                    items.append(Item('T', vread(dt, hh, u % NS), pin=24 + 3 * dt, name=f"V{dt}.{hh}"))
        else:
            for dt in range(12):
                dst = VF(dt) if dt < 6 else KF(0, dt - 6)
                for hh in range(2):
                    items.append(Item('T', vread(dt, hh, u % NS, dst), pin=4 + 3 * dt, name=f"V{dt}.{hh}"))
        s2, c2 = softmax_items(p, 2, 0, 20, cfg.edist)
        s3, c3 = softmax_items(p, 3, 20, 40, cfg.edist)
        for k in range(4): pairs.append((k, c2[k]))
        for k in range(4): pairs.append((k, c3[k]))
        link_pairs(pairs)
        items += s2 + s3
        lastA3 = [it for it in s3 if it.name == "A3.7"][0]
        lastA2 = [it for it in s2 if it.name == "A2.7"][0]
        M1 = Item('V', f"v_max3_f32 v{V_X0}, v{V_LT}, v{V_LT+1}, v{V_LT+2}", target=43, deps=[(lastA2, 0)], name="M1")
        M2 = Item('V', f"v_max_f32 v{V_X0}, v{V_X0}, v{V_LT+3}", target=44, deps=[(lastA3, 0), (M1, 0)], name="M2")
        CM = Item('V', f"v_cmp_nge_f32 vcc, s{S_THR}, v{V_X0}", target=45, deps=[(M2, 0)], name="CMP")
        items += [M1, M2, CM]
        light = set() if last else set(cfg.dmaK) | set(cfg.dmaV)
        gaps = schedule(48, items, cfg.look, light)
        assert CM.gap <= 46, CM.gap
        sh = {g: [] for g in range(48)}
        sh[cfg.bar_gap - 1].append(f"s_waitcnt vmcnt({VMW})")
        sh[cfg.bar_gap].append("s_barrier")
        tag = 'L' if last else str(u)
        if not last:
            sh[cfg.dmaK[0] - 2].append(f"s_add_u32 m0, s{S_KW}, {(u % NS)*TILEB}")
            for ii in range(3):
                o = f" offset:{1024*ii}" if ii else ""
                sh[cfg.dmaK[ii]].append(f"buffer_load_dwordx4 v{V_DV+ii}, s[{S_K}:{S_K+3}], s{S_KOFF} offen{o}{KVF} lds")
            sh[cfg.dmaV[0] - 2].append(f"s_add_u32 m0, s{S_VW}, {((u - 1) % NS)*TILEB}")
            for ii in range(3):
                o = f" offset:{1024*ii}" if ii else ""
                sh[cfg.dmaV[ii]].append(f"buffer_load_dwordx4 v{V_DV+ii}, s[{S_V}:{S_V+3}], s{S_VOFF} offen{o}{KVF} lds")
            sh[28].append(f"s_mov_b32 s{S_VOFF}, s{S_KOFF}")
            sh[29].append(f"s_add_u32 s{S_KOFF}, s{S_KOFF}, {TILEB}")
            sh[30].append(f"s_min_u32 s{S_KOFF}, s{S_KOFF}, {(NT-1)*TILEB}")
            sh[23].append("s_waitcnt lgkmcnt(0)")
            if u == U - 2:
                sh[32].append(f"s_add_u32 s{S_CNT}, s{S_CNT}, {U}")
                sh[33].append(f"s_cmp_ge_u32 s{S_CNT}, {NT}")
        sh[46].append("s_waitcnt lgkmcnt(0)")
        sh[47].append(f"s_cbranch_vccnz L_call{tag}")
        for g in range(48):
            assert len(sh[g]) <= 1, (g, sh[g])
            if not last:
                kb, qb, s = g // 24, (g % 24) // 6, g % 6
                d = vr(S(1 - p, kb, qb))
                c = vr(NM(qb)) if s == 0 else d
                e(f"v_mfma_f32_16x16x32_bf16 {d}, {vr(KF(kb,s))}, {QF(qb,s)}, {c}")
            for x in sh[g]: e(x)
            if g == 47: e.lab(f"L_ret{tag}")
            for it in gaps[g]['D'] + gaps[g]['V']: e(it.text)
            if last and any(it.kind == 'E' for it in gaps[g]['V']): e("s_nop 0")
        return gaps

    def phaseB(u):
        p = u % 2
        items = []
        items += [Item('V', f"v_add_f32 v{V_L+q}, v{V_L+q}, v{V_LT+q}", pin=q // 2, name=f"L{q}") for q in range(4)]
        for dt in range(6, 12):
            for hh in range(2):
                items.append(Item('T', vread(dt, hh, u % NS), pin=4 * (dt - 6) + 4, name=f"V{dt}.{hh}"))
        for s in range(6):
            items.append(Item('D', kread(0, s, (u + 2) % NS), pin=26 + 2 * s, name=f"K0.{s}"))
        s0, c0 = softmax_items(1 - p, 0, 2, 23, cfg.edist, earliest=2)
        s1, c1 = softmax_items(1 - p, 1, 23, 44, cfg.edist, earliest=2)
        pairs = [(k, c0[k]) for k in range(4)] + [(k, c1[k]) for k in range(4)]
        link_pairs(pairs)
        items += s0 + s1
        gaps = schedule(48, items, cfg.look)
        sh = {g: [] for g in range(48)}
        order = [(g, it) for g in range(48) for it in gaps[g]['D']]
        def wfor(name, at):
            idx = max(i for i, (g, it) in enumerate(order) if it.name == name)
            assert order[idx][0] < at
            return sum(1 for i, (g, it) in enumerate(order) if i > idx and g < at)
        sh[23].append(f"s_waitcnt lgkmcnt({wfor('V8.1', 23)})")
        sh[35].append(f"s_waitcnt lgkmcnt({wfor('V11.1', 35)})")
        sh[46].append("s_waitcnt lgkmcnt(0)")
        for g in range(48):
            dt, qb = g // 4, g % 4
            e(f"v_mfma_f32_16x16x32_bf16 {ar(O(qb,dt))}, {vr(VF(dt%6))}, {vr(P(p,qb))}, {ar(O(qb,dt))}")
            for x in sh[g]: e(x)
            for it in gaps[g]['D'] + gaps[g]['V']: e(it.text)
            if g == 47:
                if u == U - 2: e("s_cbranch_scc1 L_tail")
                if u == U - 1: e("s_branch L_loop")
        return gaps

    def fallback(p, tag, last):
        e.lab(f"L_fb{tag}")
        e("s_nop 7"); e("s_nop 7")
        for qb in range(4):
            a = S(p, 0, qb); b = S(p, 1, qb); m = V_X0
            e(f"v_max3_f32 v{m}, v{a}, v{a+1}, v{a+2}")
            e(f"v_max3_f32 v{m}, v{m}, v{a+3}, v{b}")
            e(f"v_max3_f32 v{m}, v{m}, v{b+1}, v{b+2}")
            e(f"v_max_f32 v{m}, v{m}, v{b+3}")
            xlane("v_max_f32", m, V_X1)
            e(f"v_max_f32 v{m}, 0, v{m}")
            for r in range(4):
                e(f"v_sub_f32 v{NM(qb)+r}, v{NM(qb)+r}, v{m}")
                e(f"v_sub_f32 v{a+r}, v{a+r}, v{m}")
                e(f"v_sub_f32 v{b+r}, v{b+r}, v{m}")
                if not last:
                    e(f"v_sub_f32 v{S(1-p,0,qb)+r}, v{S(1-p,0,qb)+r}, v{m}")
                    e(f"v_sub_f32 v{S(1-p,1,qb)+r}, v{S(1-p,1,qb)+r}, v{m}")
            e(f"v_sub_f32 v{V_X1}, 0, v{m}")
            e(f"v_exp_f32 v{V_X1}, v{V_X1}")
            e("s_nop 0")
            e(f"v_mul_f32 v{V_L+qb}, v{V_L+qb}, v{V_X1}")
            for dt in range(12):
                for r in range(4):
                    e(f"v_accvgpr_read_b32 v{V_X2}, a{O(qb,dt)+r}")
                    e(f"v_mul_f32 v{V_X2}, v{V_X2}, v{V_X1}")
                    e(f"v_accvgpr_write_b32 a{O(qb,dt)+r}, v{V_X2}")
            softmax_plain(p, qb)
        e("s_nop 3")

    def filt(t):
        a = cfg.abl
        if 'nodma' in a and t.startswith('buffer_load'): return True
        if 'nods' in a and t.startswith('ds_read'): return True
        if 'noexp' in a and t.startswith('v_exp'): return True
        if 'noadd' in a and t.startswith('v_add_f32'): return True
        if 'nocvt' in a and t.startswith('v_cvt_pk'): return True
        if 'nobar' in a and t.startswith('s_barrier'): return True
        if 'nochk' in a and (t.startswith('v_max') or t.startswith('v_cmp') or t.startswith('s_cbranch_vcc')): return True
        return False
    e(".p2align 6")
    e.lab("L_loop")
    e.filt = filt if cfg.abl else None
    info = {}
    for u in range(U):
        info[f"A{u}"] = phaseA(u, False)
        info[f"B{u}"] = phaseB(u)
    e.filt = None
    e.lab("L_tail")
    phaseA(U - 1, True)
    if cfg.stamps:
        e(f"s_memtime s[{S_TS+6}:{S_TS+7}]")
    pl = (U - 1) % 2
    for qb in range(4):
        e(f"v_add_f32 v{V_L+qb}, v{V_L+qb}, v{V_LT+qb}")
    def pv_last(qb, dt):
        vf = VF(dt) if dt < 6 else KF(0, dt - 6)
        return f"v_mfma_f32_16x16x32_bf16 {ar(O(qb,dt))}, {vr(vf)}, {vr(P(pl,qb))}, {ar(O(qb,dt))}"
    for dt in range(12): e(pv_last(0, dt))
    for sw in ("v_permlane16_swap_b32", "v_permlane32_swap_b32"):
        for qb in range(4): e(f"v_mov_b32 v{V_E+qb}, v{V_L+qb}")
        e("s_nop 0")
        for qb in range(4): e(f"{sw} v{V_L+qb}, v{V_E+qb}")
        e("s_nop 0")
        for qb in range(4): e(f"v_add_f32 v{V_L+qb}, v{V_L+qb}, v{V_E+qb}")
    for qb in range(4): e(f"v_rcp_f32 v{V_L+qb}, v{V_L+qb}")
    def epi_items(qb):
        L = []
        boff = (qb % 2) * 16 * OPAD
        tb = V_S + (qb % 2) * 32
        for dt in range(12):
            t = tb + (dt % 4) * 6
            for r in range(4): L.append(f"v_accvgpr_read_b32 v{t+r}, a{O(qb,dt)+r}")
            for r in range(4): L.append(f"v_mul_f32 v{t+r}, v{t+r}, v{V_L+qb}")
            L.append(f"v_cvt_pk_bf16_f32 v{t+4}, v{t}, v{t+1}")
            L.append(f"v_cvt_pk_bf16_f32 v{t+5}, v{t+2}, v{t+3}")
            L.append(f"ds_write_b64 v{E_WA}, v[{t+4}:{t+5}] offset:{boff + dt*32}")
        L.append("s_waitcnt lgkmcnt(0)")
        rb = V_P + (qb % 2) * 0
        rb = V_V if qb == 3 else V_Q + (qb % 2) * 0
        rb = V_Q if qb % 2 == 0 else V_NM
        regs = [V_Q + 4 * k for k in range(6)] if qb % 2 == 0 else [V_NM, V_NM + 4, V_NM + 8, V_NM + 12, V_Q + 24, V_Q + 28]
        for n in range(6):
            L.append(f"ds_read_b128 {vr(regs[n])}, v{E_RA[n % 3]} offset:{boff + (n // 3) * 8 * OPAD}")
        for n in range(6):
            L.append(f"s_waitcnt lgkmcnt({5-n})")
            L.append(f"s_mov_b32 s{S_T1}, {qb*16*ROWB + (n // 3) * 3072}")
            o = (n % 3) * 1024
            L.append(f"buffer_store_dwordx4 {vr(regs[n])}, v{E_SO}, s[{S_O}:{S_O+3}], s{S_T1} offen offset:{o}" + (" nt" if cfg.ont else ""))
        return L
    for qb in range(4):
        L = epi_items(qb)
        m = [pv_last(qb + 1, dt) for dt in range(12)] if qb < 3 else []
        step = max(1, (len(L) - 20) // 12)
        k = 0
        for n, ins in enumerate(L):
            if m and n % step == 0:
                e(m.pop(0))
            e(ins)
        for x in m: e(x)
        if qb < 3: e("s_nop 7")
    if cfg.stamps:
        e("s_waitcnt vmcnt(0)")
        e(f"s_memtime s[{S_TS+8}:{S_TS+9}]")
        e(f"s_memrealtime s[{S_TS+10}:{S_TS+11}]")
        e("s_waitcnt lgkmcnt(0)")
        e(f"s_mov_b32 s{S_WS}, s60"); e(f"s_mov_b32 s{S_WS+1}, s61"); e(f"s_mov_b32 s{S_WS+2}, 0x100000"); e(f"s_mov_b32 s{S_WS+3}, 0x20000")
        e(f"s_sub_u32 s{S_T0}, s{S_TS+8}, s{S_TS}"); e(f"v_mov_b32 v2, s{S_T0}")
        e(f"s_sub_u32 s{S_T0}, s{S_TS+10}, s{S_TS+2}"); e(f"v_mov_b32 v3, s{S_T0}")
        if cfg.stamps in ('pro', 'pro2'):
            for k in range(6):
                e(f"s_sub_u32 s{S_T0}, s{76+2*k}, s{S_TS}"); e(f"v_mov_b32 v{4+k}, s{S_T0}")
        else:
            e(f"s_sub_u32 s{S_T0}, s{S_TS+4}, s{S_TS}"); e(f"v_mov_b32 v4, s{S_T0}")
            e(f"s_sub_u32 s{S_T0}, s{S_TS+6}, s{S_TS+4}"); e(f"v_mov_b32 v5, s{S_T0}")
            e(f"s_sub_u32 s{S_T0}, s{S_TS+8}, s{S_TS+6}"); e(f"v_mov_b32 v6, s{S_T0}")
            for j in (7, 8, 9): e(f"v_mov_b32 v{j}, 0")
        e("s_lshl_b32 s3, s2, 5")
        e("v_mov_b32 v10, s3")
        e("v_cmp_eq_u32 vcc, 0, v0")
        e("s_and_saveexec_b64 s[62:63], vcc")
        e("s_cbranch_execz L_end")
        e(f"buffer_store_dwordx4 v[2:5], v10, s[{S_WS}:{S_WS+3}], 0 offen")
        e(f"buffer_store_dwordx4 v[6:9], v10, s[{S_WS}:{S_WS+3}], 0 offen offset:16")
    e.lab("L_end")
    e("s_endpgm")
    for u in range(U):
        e.lab(f"L_call{u}")
        e(f"s_mov_b32 s{S_RET}, {u}")
        e(f"s_branch L_fb{u % 2}")
    e.lab("L_callL")
    e("s_branch L_fbL")
    for p in range(2):
        fallback(p, str(p), False)
        sites = [u for u in range(U) if u % 2 == p]
        for u in sites[:-1]:
            e(f"s_cmp_eq_u32 s{S_RET}, {u}")
            e(f"s_cbranch_scc1 L_retx{u}")
        e(f"s_branch L_retx{sites[-1]}")
    for u in range(U):
        e.lab(f"L_retx{u}")
        if u == U - 2: e(f"s_cmp_ge_u32 s{S_CNT}, {NT}")
        e(f"s_branch L_ret{u}")
    fallback(pl, "L", True)
    e("s_branch L_retL")
    e.raw('.section .rodata,"a"')
    e.raw(".p2align 6")
    e.raw(f".amdhsa_kernel {KNAME}")
    e.raw("  .amdhsa_next_free_vgpr 512")
    e.raw("  .amdhsa_next_free_sgpr 96")
    e.raw("  .amdhsa_accum_offset 256")
    e.raw("  .amdhsa_group_segment_fixed_size 0")
    e.raw("  .amdhsa_kernarg_size 48")
    e.raw("  .amdhsa_user_sgpr_count 2")
    e.raw("  .amdhsa_user_sgpr_kernarg_segment_ptr 1")
    e.raw("  .amdhsa_system_sgpr_workgroup_id_x 1")
    e.raw(".end_amdhsa_kernel")
    return e.text(), info

def show(gaps, tag):
    print(tag)
    for g, x in enumerate(gaps):
        print(f"  {g:2d}: " + " | ".join(it.name for it in x['D'] + x['V']))

if __name__ == "__main__":
    import argparse
    ap = argparse.ArgumentParser()
    ap.add_argument("-o", default="standalone__gqa_softmax__prompt.s")
    ap.add_argument("--stamps", default="")
    ap.add_argument("--show", action="store_true")
    ap.add_argument("--set", nargs="*", default=[], help="cfg overrides k=v")
    a = ap.parse_args()
    cfg = Cfg(stamps=a.stamps)
    for kv in a.set:
        k, v = kv.split("=", 1)
        setattr(cfg, k, eval(v))
    txt, info = gen(cfg)
    open(a.o, "w").write(txt)
    if a.show:
        show(info['A0'], "phase A"); show(info['B0'], "phase B")
    print("wrote", a.o, len(txt), "bytes")
```

```python
import sys, math, struct

KNAME = "standalone__gqa_softmax__prompt_kernel"
H, SEQ, D = 32, 2048, 192
ROWB = D * 2
TILE = 32
TILEB = TILE * ROWB
NT = SEQ // TILE
HEADB = SEQ * ROWB
CSCALE = math.log2(math.e) / math.sqrt(D)
OPAD = 400
def f2u(x): return struct.unpack('<I', struct.pack('<f', x))[0]

class Cfg:
    NS = 4
    THR = 65536.0
    stamps = ""
    qnt = True
    kvnt = False
    ont = False
    abl = ()
    edist = 2
    look = 2
    dmaK = (4, 8, 12)
    dmaV = (16, 20, 26)
    bar_gap = 1
    qlds = True
    otouch = True
    zmfma = True
    cwarm = True
    def __init__(self, **kw):
        for k, v in kw.items(): setattr(self, k, v)

V_T0, V_T1, V_T2 = 1, 2, 3
V_L = 4
V_LT = 8
V_E = 12
V_KA = 20
V_VA = 22
V_DV = 26
V_X0, V_X1, V_X2 = 29, 30, 31
V_S = 32
V_P = 96
V_NM = 128
V_K = 144
V_V = 192
V_Q = 216
V_Y = 248

E_WA, E_SO = 1, 2
E_RA = (3, 253, 254)

def S(p, kb, qb): return V_S + p * 32 + (kb * 4 + qb) * 4
def P(p, qb): return V_P + p * 16 + qb * 4
def NM(qb): return V_NM + qb * 4
def KF(kb, s): return V_K + (kb * 6 + s) * 4
def VF(j): return V_V + j * 4
def vr(b, n=4): return f"v[{b}:{b+n-1}]"
def ar(b, n=4): return f"a[{b}:{b+n-1}]"
def O(qb, dt): return (qb * 12 + dt) * 4
def QF(qb, s):
    n = qb * 6 + s
    return ar(192 + 4 * n) if n < 16 else vr(V_Q + 4 * (n - 16))
def QTMP(qb, s):
    n = qb * 6 + s
    if n < 8: return V_S + 32 + 4 * n
    if n < 14: return V_V + 4 * (n - 8)
    if n < 16: return V_P + 16 + 4 * (n - 14)
    return V_Q + 4 * (n - 16)

S_K, S_V, S_O, S_Q = 8, 12, 16, 20
S_W = 24
S_KOFF = 25
S_VOFF = 26
S_CNT = 31
S_THR = 34
S_KW = 35
S_VW = 36
S_RET = 37
S_QW = 38
S_T0, S_T1, S_T2, S_T3 = 40, 41, 42, 43
S_C = 44
S_WS = 48
S_TS = 64

class Emit:
    def __init__(self): self.l = []; self.filt = None
    def __call__(self, s):
        if self.filt and self.filt(s): return
        self.l.append("    " + s)
    def lab(self, s): self.l.append(s + ":")
    def raw(self, s): self.l.append(s)
    def text(self): return "\n".join(self.l) + "\n"

class Item:
    def __init__(self, kind, text, target=0, earliest=0, pin=None, deps=(), name=""):
        self.kind = kind; self.text = text; self.target = target; self.earliest = earliest; self.pin = pin
        self.deps = list(deps); self.gap = None; self.name = name

def schedule(ngaps, items, look=2, light=()):
    gaps = [dict(D=[], V=[]) for _ in range(ngaps)]
    def cap(g):
        c = 1 if g in light else 2
        for it in gaps[g]['D'] + gaps[g]['V']:
            c -= 2 if it.kind == 'E' else 1
        return c
    for it in items:
        if it.pin is not None:
            g = gaps[it.pin]
            (g['D'] if it.kind in 'DT' else g['V']).append(it)
            it.gap = it.pin
    for g in range(ngaps):
        nD = [x.kind for x in gaps[g]['D']]
        assert nD.count('D') <= 1 and not ('D' in nD and 'T' in nD), (g, nD)
    rest = [it for it in items if it.pin is None]
    for g in range(ngaps):
        while True:
            c = cap(g)
            if c <= 0: break
            cands = []
            for it in rest:
                if it.gap is not None or it.earliest > g or it.target > g + look: continue
                if any(d.gap is None or d.gap + dist > g for d, dist in it.deps): continue
                if it.kind == 'E' and c < 2: continue
                cands.append(it)
            if not cands: break
            cands.sort(key=lambda x: x.target)
            it = cands[0]
            it.gap = g
            gaps[g]['V'].append(it)
    left = [it for it in rest if it.gap is None]
    assert not left, "unplaced: " + ", ".join(x.name for x in left)
    return gaps

def softmax_items(p, qb, t0, t1, edist, earliest=0):
    vals = [S(p, 0, qb) + i for i in range(4)] + [S(p, 1, qb) + i for i in range(4)]
    lt = V_LT + qb
    seq = []; prev_add = None; cons = {}
    for u in range(4):
        e0, e1 = V_E + 2 * u, V_E + 2 * u + 1
        E0 = Item('E', f"v_exp_f32 v{e0}, v{vals[2*u]}", name=f"E{qb}.{2*u}")
        E1 = Item('E', f"v_exp_f32 v{e1}, v{vals[2*u+1]}", name=f"E{qb}.{2*u+1}", deps=[(E0, 1)])
        if u == 0:
            A = [Item('V', f"v_add_f32 v{lt}, v{e0}, v{e1}", name=f"A{qb}.01", deps=[(E0, edist), (E1, edist)])]
        else:
            A0 = Item('V', f"v_add_f32 v{lt}, v{lt}, v{e0}", name=f"A{qb}.{2*u}", deps=[(E0, edist), (prev_add, 0)])
            A1 = Item('V', f"v_add_f32 v{lt}, v{lt}, v{e1}", name=f"A{qb}.{2*u+1}", deps=[(E1, edist), (A0, 0)])
            A = [A0, A1]
        prev_add = A[-1]
        C = Item('V', f"v_cvt_pk_bf16_f32 v{P(p,qb)+u}, v{e0}, v{e1}", name=f"C{qb}.{u}", deps=[(E0, edist), (E1, edist)])
        seq += [E0, E1] + A + [C]
        cons[u] = (E0, E1, A, C)
    tot = sum(2 if it.kind == 'E' else 1 for it in seq)
    acc = 0
    for it in seq:
        it.target = t0 + (t1 - t0) * acc / tot
        it.earliest = earliest
        acc += 2 if it.kind == 'E' else 1
    return seq, cons

def link_pairs(allpairs):
    last = {}
    for pr, (E0, E1, A, C) in allpairs:
        if pr in last:
            pA, pC = last[pr]
            for a in pA: E0.deps.append((a, 0))
            E0.deps.append((pC, 0))
        last[pr] = (A, C)

def gen(cfg):
    NS = cfg.NS; U = NS
    assert U % 2 == 0 and NT % U == 0
    KBASE = 0
    VBASE = NS * TILEB
    OBASE = 2 * NS * TILEB
    LDS = OBASE + 4 * 2 * 16 * OPAD
    assert LDS <= 163840
    e = Emit()
    e.raw(f"; @launch grid=(256,1,1) block=(256,1,1) lds={LDS}")
    e.raw('.amdgcn_target "amdgcn-amd-amdhsa--gfx950"')
    e.raw(".text")
    e.raw(f".globl {KNAME}")
    e.raw(".p2align 8")
    e.raw(f".type {KNAME},@function")
    e.lab(KNAME)
    def stamp(k, mode):
        if cfg.stamps == mode: e(f"s_memtime s[{76+2*k}:{77+2*k}]")
    KVF = " nt" if cfg.kvnt else ""
    e("s_cmp_ge_u32 s2, 256")
    e("s_cbranch_scc1 L_end")
    e("s_load_dwordx4 s[4:7], s[0:1], 0")
    e("s_load_dwordx4 s[56:59], s[0:1], 16")
    if cfg.stamps:
        e(f"s_load_dwordx2 s[60:61], s[0:1], {32 if cfg.stamps == 'dbg' else 40}")
        e(f"s_memtime s[{S_TS}:{S_TS+1}]")
        e(f"s_memrealtime s[{S_TS+2}:{S_TS+3}]")
    if cfg.cwarm:
        e("s_getpc_b64 s[46:47]")
        e(f"v_lshlrev_b32 v{V_Y+6}, 7, v0")
        e(f"v_min_u32 v{V_Y+6}, L_end-{KNAME}-16, v{V_Y+6}")
        e(f"global_load_dword v{V_Y+7}, v{V_Y+6}, s[46:47]")
        cw = True
    e(f"v_and_b32 v{V_T0}, 63, v0")
    e(f"v_lshrrev_b32 v{V_T1}, 6, v0")
    e(f"v_and_b32 v{V_X0}, 15, v0")
    e(f"v_readfirstlane_b32 s{S_W}, v{V_T1}")
    e(f"v_lshrrev_b32 v{V_X1}, 4, v{V_T0}")
    e(f"s_and_b32 s{S_T0}, s2, 7")
    e(f"s_lshl_b32 s{S_T0}, s{S_T0}, 2")
    e(f"s_lshr_b32 s{S_T1}, s2, 6")
    e(f"s_add_u32 s{S_T0}, s{S_T0}, s{S_T1}")
    e(f"s_lshr_b32 s{S_T1}, s2, 3")
    e(f"s_and_b32 s{S_T1}, s{S_T1}, 7")
    e(f"s_mul_i32 s{S_T2}, s{S_T0}, {HEADB}")
    e(f"s_mul_i32 s{S_T3}, s{S_T1}, {256*ROWB}")
    e(f"s_mul_i32 s{S_T1}, s{S_W}, {64*ROWB}")
    e(f"s_add_u32 s{S_T3}, s{S_T3}, s{S_T1}")
    e(f"s_add_u32 s{S_T3}, s{S_T3}, s{S_T2}")
    e(f"s_mul_i32 s{S_T1}, s{S_W}, 192")
    for ii in range(3):
        e(f"v_add_u32 v{V_T1}, s{S_T1}, v{V_T0}")
        if ii: e(f"v_add_u32 v{V_T1}, {64*ii}, v{V_T1}")
        e(f"v_mul_u32_u24 v{V_T2}, 2731, v{V_T1}")
        e(f"v_lshrrev_b32 v{V_T2}, 16, v{V_T2}")
        e(f"v_mul_u32_u24 v{V_X2}, 24, v{V_T2}")
        e(f"v_sub_u32 v{V_T1}, v{V_T1}, v{V_X2}")
        e(f"v_and_b32 v{V_X2}, 6, v{V_T2}")
        e(f"v_xor_b32 v{V_T1}, v{V_T1}, v{V_X2}")
        e(f"v_lshlrev_b32 v{V_T1}, 4, v{V_T1}")
        e(f"v_mul_u32_u24 v{V_T2}, {ROWB}, v{V_T2}")
        e(f"v_add_u32 v{V_DV+ii}, v{V_T1}, v{V_T2}")
        if ii: e(f"v_subrev_u32 v{V_DV+ii}, {1024*ii}, v{V_DV+ii}")
    if cfg.qlds:
        e(f"s_mul_i32 s{S_T1}, s{S_W}, 3072")
        for ii in range(3): e(f"v_subrev_u32 v{V_Y+ii}, s{S_T1}, v{V_DV+ii}")
        e(f"s_mul_i32 s{S_QW}, s{S_W}, {2*16*OPAD}")
        e(f"s_add_u32 s{S_QW}, s{S_QW}, {OBASE}")
    else:
        e(f"v_mul_u32_u24 v{V_Y}, {ROWB}, v{V_X0}")
        e(f"v_lshl_add_u32 v{V_Y}, v{V_X1}, 4, v{V_Y}")
    e(f"s_mul_i32 s{S_T1}, s{S_W}, 3072")
    e(f"s_add_u32 s{S_KW}, s{S_T1}, {KBASE}")
    e(f"s_add_u32 s{S_VW}, s{S_T1}, {VBASE}")
    e("s_waitcnt lgkmcnt(0)")
    stamp(0, 'pro2')
    def srd(sr, lo, hi, off, nrec):
        e(f"s_add_u32 s{sr}, s{lo}, s{off}")
        e(f"s_addc_u32 s{sr+1}, s{hi}, 0")
        e(f"s_mov_b32 s{sr+2}, {nrec}")
        e(f"s_mov_b32 s{sr+3}, 0x20000")
    srd(S_K, 6, 7, S_T2, HEADB)
    vq = ["CW"] if cfg.cwarm else []
    def dma(srd_, t, wreg, tag):
        e(f"s_mov_b32 s{S_T1}, {t*TILEB}")
        e(f"s_add_u32 m0, s{wreg}, {(t % NS)*TILEB}")
        e("s_nop 0")
        for ii in range(3):
            o = f" offset:{1024*ii}" if ii else ""
            e(f"buffer_load_dwordx4 v{V_DV+ii}, s[{srd_}:{srd_+3}], s{S_T1} offen{o}{KVF} lds")
            vq.append(tag)
    def dmaK(t): dma(S_K, t, S_KW, f"K{t}")
    def dmaV(t): dma(S_V, t, S_VW, f"V{t}")
    def vwait(tag):
        idx = max(i for i, t in enumerate(vq) if t == tag)
        e(f"s_waitcnt vmcnt({len(vq) - 1 - idx})")
    QNT = " nt" if cfg.qnt else ""
    def qload1(qb, s):
        if cfg.qlds:
            half, ii = s // 3, s % 3
            if ii == 0:
                e(f"s_mov_b32 s{S_T0}, {qb*16*ROWB + half*3072}")
                e(f"s_add_u32 m0, s{S_QW}, {(qb % 2)*16*OPAD + half*3072}")
                e("s_nop 0")
            o = f" offset:{1024*ii}" if ii else ""
            e(f"buffer_load_dwordx4 v{V_Y+ii}, s[{S_Q}:{S_Q+3}], s{S_T0} offen{o}{QNT} lds")
            vq.append(f"Q{qb}.{s}")
            return
        so = "0" if qb == 0 else f"s{S_T0}"
        if qb and True: e(f"s_mov_b32 s{S_T0}, {qb*16*ROWB}")
        e(f"buffer_load_dwordx4 {vr(QTMP(qb,s))}, v{V_Y}, s[{S_Q}:{S_Q+3}], {so} offen offset:{s*64}" + QNT)
        vq.append(f"Q{qb}.{s}")
    dmaK(0)
    srd(S_Q, 4, 5, S_T3, 64 * ROWB)
    for s in range(6): qload1(0, s)
    stamp(1, 'pro2')
    srd(S_V, 56, 57, S_T2, HEADB)
    srd(S_O, 58, 59, S_T3, 64 * ROWB)
    e(f"v_and_b32 v{V_T1}, 6, v{V_X0}")
    e(f"v_xor_b32 v{V_T1}, v{V_T1}, v{V_X1}")
    e(f"v_lshlrev_b32 v{V_T1}, 4, v{V_T1}")
    e(f"v_mul_u32_u24 v{V_T2}, {ROWB}, v{V_X0}")
    e(f"v_add_u32 v{V_KA}, v{V_T1}, v{V_T2}")
    if KBASE: e(f"v_add_u32 v{V_KA}, {KBASE}, v{V_KA}")
    e(f"v_xor_b32 v{V_KA+1}, 64, v{V_KA}")
    e(f"v_lshrrev_b32 v{V_T1}, 2, v{V_X0}")
    e(f"v_lshl_add_u32 v{V_T1}, v{V_X1}, 2, v{V_T1}")
    e(f"v_and_b32 v{V_T2}, 6, v{V_T1}")
    e(f"v_bfe_u32 v{V_X2}, v{V_X0}, 1, 1")
    e(f"v_or_b32 v{V_T2}, v{V_T2}, v{V_X2}")
    e(f"v_lshlrev_b32 v{V_T2}, 4, v{V_T2}")
    e(f"v_and_b32 v{V_X2}, 1, v{V_X0}")
    e(f"v_lshl_add_u32 v{V_T2}, v{V_X2}, 3, v{V_T2}")
    e(f"v_mul_u32_u24 v{V_T1}, {ROWB}, v{V_T1}")
    e(f"v_add_u32 v{V_VA}, v{V_T1}, v{V_T2}")
    e(f"v_add_u32 v{V_VA}, {VBASE}, v{V_VA}")
    for j in range(1, 4):
        e(f"v_xor_b32 v{V_VA+j}, {j<<5}, v{V_VA}")
    if cfg.otouch:
        e(f"buffer_load_dword v{V_Y+7}, off, s[{S_O}:{S_O+3}], 0")
        vq.append("OT")
    if cfg.qlds:
        e(f"v_add_u32 v{V_Y+3}, s{S_QW}, v{V_KA}")
        e(f"v_add_u32 v{V_Y+4}, s{S_QW}, v{V_KA+1}")
    e(f"s_mul_i32 s{S_T0}, s{S_W}, {2*16*OPAD}")
    e(f"s_add_u32 s{S_T0}, s{S_T0}, {OBASE}")
    e(f"v_mul_u32_u24 v{E_WA}, {OPAD}, v{V_X0}")
    e(f"v_lshl_add_u32 v{E_WA}, v{V_X1}, 3, v{E_WA}")
    e(f"v_add_u32 v{E_WA}, s{S_T0}, v{E_WA}")
    e(f"v_and_b32 v{V_X0}, 63, v0")
    e(f"v_lshlrev_b32 v{E_SO}, 4, v{V_X0}")
    for n in range(3):
        e(f"v_add_u32 v{V_X1}, {64*n}, v{V_X0}")
        e(f"v_mul_u32_u24 v{V_X2}, 2731, v{V_X1}")
        e(f"v_lshrrev_b32 v{V_X2}, 16, v{V_X2}")
        e(f"v_add_u32 v{V_X1}, v{V_X1}, v{V_X2}")
        e(f"v_lshlrev_b32 v{E_RA[n]}, 4, v{V_X1}")
        e(f"v_add_u32 v{E_RA[n]}, s{S_T0}, v{E_RA[n]}")
    if cfg.zmfma:
        for i in range(4): e(f"v_mov_b32 v{V_E+i}, 0")
        e("s_nop 1")
        for i in range(12): e(f"v_mfma_f32_32x32x16_bf16 a[{16*i}:{16*i+15}], {vr(V_E)}, {vr(V_E)}, 0")
    else:
        for i in range(192): e(f"v_accvgpr_write_b32 a{i}, 0")
    for i in range(4): e(f"v_mov_b32 v{V_L+i}, 0")
    e(f"s_mov_b32 s{S_C}, {hex(f2u(CSCALE))}")
    e(f"s_mov_b32 s{S_THR}, {hex(f2u(cfg.THR))}")
    e(f"s_mov_b32 s{S_KOFF}, {NS*TILEB}")
    e(f"s_mov_b32 s{S_VOFF}, {(NS-1)*TILEB}")
    e(f"s_mov_b32 s{S_CNT}, 0")
    stamp(2, 'pro2')
    dmaK(1)
    for s in range(6): qload1(1, s)
    stamp(3, 'pro2')
    vwait("K0")
    e("s_barrier")
    stamp(4, 'pro2')
    def kread(kb, s, stage):
        off = stage * TILEB + kb * 16 * ROWB + (s >> 1) * 128
        return f"ds_read_b128 {vr(KF(kb,s))}, v{V_KA + (s & 1)} offset:{off}"
    def vread(dt, hh, stage, dst=None):
        off = stage * TILEB + hh * 16 * ROWB + (dt >> 2) * 128
        b = (VF(dt % 6) if dst is None else dst) + 2 * hh
        return f"ds_read_b64_tr_b16 v[{b}:{b+1}], v{V_VA + (dt & 3)} offset:{off}"
    for kb in range(2):
        for s in range(6): e(kread(kb, s, 0))
    def xlane(op, x, t):
        e(f"v_mov_b32 v{t}, v{x}")
        e("s_nop 1")
        e(f"v_permlane16_swap_b32 v{x}, v{t}")
        e("s_nop 1")
        e(f"{op} v{x}, v{x}, v{t}")
        e(f"v_mov_b32 v{t}, v{x}")
        e("s_nop 1")
        e(f"v_permlane32_swap_b32 v{x}, v{t}")
        e("s_nop 1")
        e(f"{op} v{x}, v{x}, v{t}")
    def softmax_plain(p, qb):
        vals = [S(p, 0, qb) + i for i in range(4)] + [S(p, 1, qb) + i for i in range(4)]
        lt = V_LT + qb
        for k in range(8): e(f"v_exp_f32 v{V_E+k}, v{vals[k]}")
        e("s_nop 0")
        e(f"v_add_f32 v{lt}, v{V_E}, v{V_E+1}")
        for k in range(2, 8): e(f"v_add_f32 v{lt}, v{lt}, v{V_E+k}")
        for u in range(4):
            e(f"v_cvt_pk_bf16_f32 v{P(p,qb)+u}, v{V_E+2*u}, v{V_E+2*u+1}")
    ring = [("V", 0)]
    for t in range(2, NS): ring += [("K", t), ("V", t - 1)]
    pend = [[("Q", 2, s)] for s in range(6)] + [[("Q", 3, s)] for s in range(6)]
    ringsched = {}
    for n, r in enumerate(ring): ringsched.setdefault(n * 12 // len(ring), []).append(r)
    for k in range(12): pend.append(ringsched.get(k, []))
    def issue(lst):
        for it in lst:
            if it[0] == "Q": qload1(it[1], it[2])
            elif it[0] == "K": dmaK(it[1])
            else: dmaV(it[1])
    def qk0(qb, s):
        for kb in range(2):
            c = "0" if s == 0 else vr(S(0, kb, qb))
            e(f"v_mfma_f32_16x16x32_bf16 {vr(S(0,kb,qb))}, {vr(KF(kb,s))}, {QF(qb,s)}, {c}")
    for qb in range(4):
        if qb == 2:
            vwait("K1")
            e("s_barrier")
        if cfg.qlds:
            vwait(f"Q{qb}.5")
            stamp(2 + qb, 'pro')
            for s in range(6):
                off = (qb % 2) * 16 * OPAD + (s >> 1) * 128
                e(f"ds_read_b128 {vr(QTMP(qb,s))}, v{V_Y + 3 + (s & 1)} offset:{off}")
            e("s_waitcnt lgkmcnt(0)")
        for s in range(6):
            issue(pend.pop(0))
            if not cfg.qlds:
                vwait(f"Q{qb}.{s}")
                if s == 0: stamp(2 + qb, 'pro')
            src = QTMP(qb, s); n = qb * 6 + s
            for r in range(4):
                x = src + r
                t0, t1, t2 = V_E + (3 * r) % 6, V_E + (3 * r) % 6 + 1, V_E + (3 * r) % 6 + 2
                e(f"v_and_b32 v{t0}, 0xffff0000, v{x}")
                e(f"v_lshlrev_b32 v{t1}, 16, v{x}")
                e(f"v_mul_f32 v{t0}, s{S_C}, v{t0}")
                e(f"v_mul_f32 v{t1}, s{S_C}, v{t1}")
                if n < 16:
                    e(f"v_cvt_pk_bf16_f32 v{t2}, v{t1}, v{t0}")
                    e(f"v_accvgpr_write_b32 a{192+4*n+r}, v{t2}")
                else:
                    e(f"v_cvt_pk_bf16_f32 v{x}, v{t1}, v{t0}")
                if r == 1 and s > 0:
                    if qb == 0 and s == 1: e("s_waitcnt lgkmcnt(0)")
                    qk0(qb, s - 1)
        e("s_nop 1")
        qk0(qb, 5)
        if qb == 3:
            for s in range(6): e(kread(0, s, 1 % NS))
        e("s_nop 7")
        e("s_nop 1")
        a = S(0, 0, qb); b = S(0, 1, qb); m = V_X0
        e(f"v_max3_f32 v{m}, v{a}, v{a+1}, v{a+2}")
        e(f"v_max3_f32 v{m}, v{m}, v{a+3}, v{b}")
        e(f"v_max3_f32 v{m}, v{m}, v{b+1}, v{b+2}")
        e(f"v_max_f32 v{m}, v{m}, v{b+3}")
        xlane("v_max_f32", m, V_X1)
        for r in range(4):
            e(f"v_sub_f32 v{NM(qb)+r}, 0, v{m}")
        for r in range(4):
            e(f"v_sub_f32 v{a+r}, v{a+r}, v{m}")
            e(f"v_sub_f32 v{b+r}, v{b+r}, v{m}")
        if qb < 2: softmax_plain(0, qb)
    assert not pend
    e("s_waitcnt lgkmcnt(0)")
    if cfg.stamps:
        e(f"s_memtime s[{S_TS+4}:{S_TS+5}]")
        e("s_waitcnt lgkmcnt(0)")

    VMW = 3 + 6 * (NS - 3)
    fb_sites = {0: [], 1: []}

    def phaseA(u, last):
        p = u % 2
        items = []; pairs = []
        if not last:
            for s in range(6):
                items.append(Item('D', kread(1, s, (u + 1) % NS), pin=2 * s, name=f"K1.{s}"))
            for dt in range(6):
                for hh in range(2):
                    items.append(Item('T', vread(dt, hh, u % NS), pin=24 + 3 * dt, name=f"V{dt}.{hh}"))
        else:
            for dt in range(12):
                dst = VF(dt) if dt < 6 else KF(0, dt - 6)
                for hh in range(2):
                    items.append(Item('T', vread(dt, hh, u % NS, dst), pin=4 + 3 * dt, name=f"V{dt}.{hh}"))
        s2, c2 = softmax_items(p, 2, 0, 20, cfg.edist)
        s3, c3 = softmax_items(p, 3, 20, 40, cfg.edist)
        for k in range(4): pairs.append((k, c2[k]))
        for k in range(4): pairs.append((k, c3[k]))
        link_pairs(pairs)
        items += s2 + s3
        lastA3 = [it for it in s3 if it.name == "A3.7"][0]
        lastA2 = [it for it in s2 if it.name == "A2.7"][0]
        M1 = Item('V', f"v_max3_f32 v{V_X0}, v{V_LT}, v{V_LT+1}, v{V_LT+2}", target=43, deps=[(lastA2, 0)], name="M1")
        M2 = Item('V', f"v_max_f32 v{V_X0}, v{V_X0}, v{V_LT+3}", target=44, deps=[(lastA3, 0), (M1, 0)], name="M2")
        CM = Item('V', f"v_cmp_nge_f32 vcc, s{S_THR}, v{V_X0}", target=45, deps=[(M2, 0)], name="CMP")
        items += [M1, M2, CM]
        light = set() if last else set(cfg.dmaK) | set(cfg.dmaV)
        gaps = schedule(48, items, cfg.look, light)
        assert CM.gap <= 46, CM.gap
        sh = {g: [] for g in range(48)}
        sh[cfg.bar_gap - 1].append(f"s_waitcnt vmcnt({VMW})")
        sh[cfg.bar_gap].append("s_barrier")
        tag = 'L' if last else str(u)
        if not last:
            sh[cfg.dmaK[0] - 2].append(f"s_add_u32 m0, s{S_KW}, {(u % NS)*TILEB}")
            for ii in range(3):
                o = f" offset:{1024*ii}" if ii else ""
                sh[cfg.dmaK[ii]].append(f"buffer_load_dwordx4 v{V_DV+ii}, s[{S_K}:{S_K+3}], s{S_KOFF} offen{o}{KVF} lds")
            sh[cfg.dmaV[0] - 2].append(f"s_add_u32 m0, s{S_VW}, {((u - 1) % NS)*TILEB}")
            for ii in range(3):
                o = f" offset:{1024*ii}" if ii else ""
                sh[cfg.dmaV[ii]].append(f"buffer_load_dwordx4 v{V_DV+ii}, s[{S_V}:{S_V+3}], s{S_VOFF} offen{o}{KVF} lds")
            sh[28].append(f"s_mov_b32 s{S_VOFF}, s{S_KOFF}")
            sh[29].append(f"s_add_u32 s{S_KOFF}, s{S_KOFF}, {TILEB}")
            sh[30].append(f"s_min_u32 s{S_KOFF}, s{S_KOFF}, {(NT-1)*TILEB}")
            sh[23].append("s_waitcnt lgkmcnt(0)")
            if u == U - 2:
                sh[32].append(f"s_add_u32 s{S_CNT}, s{S_CNT}, {U}")
                sh[33].append(f"s_cmp_ge_u32 s{S_CNT}, {NT}")
        sh[46].append("s_waitcnt lgkmcnt(0)")
        sh[47].append(f"s_cbranch_vccnz L_call{tag}")
        for g in range(48):
            assert len(sh[g]) <= 1, (g, sh[g])
            if not last:
                kb, qb, s = g // 24, (g % 24) // 6, g % 6
                d = vr(S(1 - p, kb, qb))
                c = vr(NM(qb)) if s == 0 else d
                e(f"v_mfma_f32_16x16x32_bf16 {d}, {vr(KF(kb,s))}, {QF(qb,s)}, {c}")
            for x in sh[g]: e(x)
            if g == 47: e.lab(f"L_ret{tag}")
            for it in gaps[g]['D'] + gaps[g]['V']: e(it.text)
            if last and any(it.kind == 'E' for it in gaps[g]['V']): e("s_nop 0")
        return gaps

    def phaseB(u):
        p = u % 2
        items = []
        items += [Item('V', f"v_add_f32 v{V_L+q}, v{V_L+q}, v{V_LT+q}", pin=q // 2, name=f"L{q}") for q in range(4)]
        for dt in range(6, 12):
            for hh in range(2):
                items.append(Item('T', vread(dt, hh, u % NS), pin=4 * (dt - 6) + 4, name=f"V{dt}.{hh}"))
        for s in range(6):
            items.append(Item('D', kread(0, s, (u + 2) % NS), pin=26 + 2 * s, name=f"K0.{s}"))
        s0, c0 = softmax_items(1 - p, 0, 2, 23, cfg.edist, earliest=2)
        s1, c1 = softmax_items(1 - p, 1, 23, 44, cfg.edist, earliest=2)
        pairs = [(k, c0[k]) for k in range(4)] + [(k, c1[k]) for k in range(4)]
        link_pairs(pairs)
        items += s0 + s1
        gaps = schedule(48, items, cfg.look)
        sh = {g: [] for g in range(48)}
        order = [(g, it) for g in range(48) for it in gaps[g]['D']]
        def wfor(name, at):
            idx = max(i for i, (g, it) in enumerate(order) if it.name == name)
            assert order[idx][0] < at
            return sum(1 for i, (g, it) in enumerate(order) if i > idx and g < at)
        sh[23].append(f"s_waitcnt lgkmcnt({wfor('V8.1', 23)})")
        sh[35].append(f"s_waitcnt lgkmcnt({wfor('V11.1', 35)})")
        sh[46].append("s_waitcnt lgkmcnt(0)")
        for g in range(48):
            dt, qb = g // 4, g % 4
            e(f"v_mfma_f32_16x16x32_bf16 {ar(O(qb,dt))}, {vr(VF(dt%6))}, {vr(P(p,qb))}, {ar(O(qb,dt))}")
            for x in sh[g]: e(x)
            for it in gaps[g]['D'] + gaps[g]['V']: e(it.text)
            if g == 47:
                if u == U - 2: e("s_cbranch_scc1 L_tail")
                if u == U - 1: e("s_branch L_loop")
        return gaps

    def fallback(p, tag, last):
        e.lab(f"L_fb{tag}")
        e("s_nop 7"); e("s_nop 7")
        for qb in range(4):
            a = S(p, 0, qb); b = S(p, 1, qb); m = V_X0
            e(f"v_max3_f32 v{m}, v{a}, v{a+1}, v{a+2}")
            e(f"v_max3_f32 v{m}, v{m}, v{a+3}, v{b}")
            e(f"v_max3_f32 v{m}, v{m}, v{b+1}, v{b+2}")
            e(f"v_max_f32 v{m}, v{m}, v{b+3}")
            xlane("v_max_f32", m, V_X1)
            e(f"v_max_f32 v{m}, 0, v{m}")
            for r in range(4):
                e(f"v_sub_f32 v{NM(qb)+r}, v{NM(qb)+r}, v{m}")
                e(f"v_sub_f32 v{a+r}, v{a+r}, v{m}")
                e(f"v_sub_f32 v{b+r}, v{b+r}, v{m}")
                if not last:
                    e(f"v_sub_f32 v{S(1-p,0,qb)+r}, v{S(1-p,0,qb)+r}, v{m}")
                    e(f"v_sub_f32 v{S(1-p,1,qb)+r}, v{S(1-p,1,qb)+r}, v{m}")
            e(f"v_sub_f32 v{V_X1}, 0, v{m}")
            e(f"v_exp_f32 v{V_X1}, v{V_X1}")
            e("s_nop 0")
            e(f"v_mul_f32 v{V_L+qb}, v{V_L+qb}, v{V_X1}")
            for dt in range(12):
                for r in range(4):
                    e(f"v_accvgpr_read_b32 v{V_X2}, a{O(qb,dt)+r}")
                    e(f"v_mul_f32 v{V_X2}, v{V_X2}, v{V_X1}")
                    e(f"v_accvgpr_write_b32 a{O(qb,dt)+r}, v{V_X2}")
            softmax_plain(p, qb)
        e("s_nop 3")

    def filt(t):
        a = cfg.abl
        if 'nodma' in a and t.startswith('buffer_load'): return True
        if 'nods' in a and t.startswith('ds_read'): return True
        if 'noexp' in a and t.startswith('v_exp'): return True
        if 'noadd' in a and t.startswith('v_add_f32'): return True
        if 'nocvt' in a and t.startswith('v_cvt_pk'): return True
        if 'nobar' in a and t.startswith('s_barrier'): return True
        if 'nochk' in a and (t.startswith('v_max') or t.startswith('v_cmp') or t.startswith('s_cbranch_vcc')): return True
        return False
    e(".p2align 6")
    e.lab("L_loop")
    e.filt = filt if cfg.abl else None
    info = {}
    for u in range(U):
        info[f"A{u}"] = phaseA(u, False)
        info[f"B{u}"] = phaseB(u)
    e.filt = None
    e.lab("L_tail")
    phaseA(U - 1, True)
    if cfg.stamps:
        e(f"s_memtime s[{S_TS+6}:{S_TS+7}]")
    pl = (U - 1) % 2
    for qb in range(4):
        e(f"v_add_f32 v{V_L+qb}, v{V_L+qb}, v{V_LT+qb}")
    def pv_last(qb, dt):
        vf = VF(dt) if dt < 6 else KF(0, dt - 6)
        return f"v_mfma_f32_16x16x32_bf16 {ar(O(qb,dt))}, {vr(vf)}, {vr(P(pl,qb))}, {ar(O(qb,dt))}"
    for dt in range(12): e(pv_last(0, dt))
    for sw in ("v_permlane16_swap_b32", "v_permlane32_swap_b32"):
        for qb in range(4): e(f"v_mov_b32 v{V_E+qb}, v{V_L+qb}")
        e("s_nop 0")
        for qb in range(4): e(f"{sw} v{V_L+qb}, v{V_E+qb}")
        e("s_nop 0")
        for qb in range(4): e(f"v_add_f32 v{V_L+qb}, v{V_L+qb}, v{V_E+qb}")
    for qb in range(4): e(f"v_rcp_f32 v{V_L+qb}, v{V_L+qb}")
    def epi_items(qb):
        L = []
        boff = (qb % 2) * 16 * OPAD
        tb = V_S + (qb % 2) * 32
        for dt in range(12):
            t = tb + (dt % 4) * 6
            for r in range(4): L.append(f"v_accvgpr_read_b32 v{t+r}, a{O(qb,dt)+r}")
            for r in range(4): L.append(f"v_mul_f32 v{t+r}, v{t+r}, v{V_L+qb}")
            L.append(f"v_cvt_pk_bf16_f32 v{t+4}, v{t}, v{t+1}")
            L.append(f"v_cvt_pk_bf16_f32 v{t+5}, v{t+2}, v{t+3}")
            L.append(f"ds_write_b64 v{E_WA}, v[{t+4}:{t+5}] offset:{boff + dt*32}")
        L.append("s_waitcnt lgkmcnt(0)")
        rb = V_P + (qb % 2) * 0
        rb = V_V if qb == 3 else V_Q + (qb % 2) * 0
        rb = V_Q if qb % 2 == 0 else V_NM
        regs = [V_Q + 4 * k for k in range(6)] if qb % 2 == 0 else [V_NM, V_NM + 4, V_NM + 8, V_NM + 12, V_Q + 24, V_Q + 28]
        for n in range(6):
            L.append(f"ds_read_b128 {vr(regs[n])}, v{E_RA[n % 3]} offset:{boff + (n // 3) * 8 * OPAD}")
        for n in range(6):
            L.append(f"s_waitcnt lgkmcnt({5-n})")
            L.append(f"s_mov_b32 s{S_T1}, {qb*16*ROWB + (n // 3) * 3072}")
            o = (n % 3) * 1024
            L.append(f"buffer_store_dwordx4 {vr(regs[n])}, v{E_SO}, s[{S_O}:{S_O+3}], s{S_T1} offen offset:{o}" + (" nt" if cfg.ont else ""))
        return L
    for qb in range(4):
        L = epi_items(qb)
        m = [pv_last(qb + 1, dt) for dt in range(12)] if qb < 3 else []
        step = max(1, (len(L) - 20) // 12)
        k = 0
        for n, ins in enumerate(L):
            if m and n % step == 0:
                e(m.pop(0))
            e(ins)
        for x in m: e(x)
        if qb < 3: e("s_nop 7")
    if cfg.stamps:
        e("s_waitcnt vmcnt(0)")
        e(f"s_memtime s[{S_TS+8}:{S_TS+9}]")
        e(f"s_memrealtime s[{S_TS+10}:{S_TS+11}]")
        e("s_waitcnt lgkmcnt(0)")
        e(f"s_mov_b32 s{S_WS}, s60"); e(f"s_mov_b32 s{S_WS+1}, s61"); e(f"s_mov_b32 s{S_WS+2}, 0x100000"); e(f"s_mov_b32 s{S_WS+3}, 0x20000")
        e(f"s_sub_u32 s{S_T0}, s{S_TS+8}, s{S_TS}"); e(f"v_mov_b32 v2, s{S_T0}")
        e(f"s_sub_u32 s{S_T0}, s{S_TS+10}, s{S_TS+2}"); e(f"v_mov_b32 v3, s{S_T0}")
        if cfg.stamps in ('pro', 'pro2'):
            for k in range(6):
                e(f"s_sub_u32 s{S_T0}, s{76+2*k}, s{S_TS}"); e(f"v_mov_b32 v{4+k}, s{S_T0}")
        else:
            e(f"s_sub_u32 s{S_T0}, s{S_TS+4}, s{S_TS}"); e(f"v_mov_b32 v4, s{S_T0}")
            e(f"s_sub_u32 s{S_T0}, s{S_TS+6}, s{S_TS+4}"); e(f"v_mov_b32 v5, s{S_T0}")
            e(f"s_sub_u32 s{S_T0}, s{S_TS+8}, s{S_TS+6}"); e(f"v_mov_b32 v6, s{S_T0}")
            for j in (7, 8, 9): e(f"v_mov_b32 v{j}, 0")
        if cfg.stamps == 'dbg':
            e(f"s_mov_b32 s{S_WS+2}, 64")
            e("s_mov_b32 s3, 0x1000")
            e("s_cmp_eq_u32 s2, 0"); e("s_cselect_b32 s3, 0, s3")
            e("s_cmp_eq_u32 s2, 77"); e("s_cselect_b32 s3, 20, s3")
            e("s_cmp_eq_u32 s2, 200"); e("s_cselect_b32 s3, 40, s3")
        else:
            e("s_lshl_b32 s3, s2, 5")
        e("v_mov_b32 v10, s3")
        e("v_cmp_eq_u32 vcc, 0, v0")
        e("s_and_saveexec_b64 s[62:63], vcc")
        e("s_cbranch_execz L_end")
        e(f"buffer_store_dwordx4 v[2:5], v10, s[{S_WS}:{S_WS+3}], 0 offen")
        if cfg.stamps == 'dbg':
            e(f"buffer_store_dword v6, v10, s[{S_WS}:{S_WS+3}], 0 offen offset:16")
        else:
            e(f"buffer_store_dwordx4 v[6:9], v10, s[{S_WS}:{S_WS+3}], 0 offen offset:16")
    e.lab("L_end")
    e("s_endpgm")
    for u in range(U):
        e.lab(f"L_call{u}")
        e(f"s_mov_b32 s{S_RET}, {u}")
        e(f"s_branch L_fb{u % 2}")
    e.lab("L_callL")
    e("s_branch L_fbL")
    for p in range(2):
        fallback(p, str(p), False)
        sites = [u for u in range(U) if u % 2 == p]
        for u in sites[:-1]:
            e(f"s_cmp_eq_u32 s{S_RET}, {u}")
            e(f"s_cbranch_scc1 L_retx{u}")
        e(f"s_branch L_retx{sites[-1]}")
    for u in range(U):
        e.lab(f"L_retx{u}")
        if u == U - 2: e(f"s_cmp_ge_u32 s{S_CNT}, {NT}")
        e(f"s_branch L_ret{u}")
    fallback(pl, "L", True)
    e("s_branch L_retL")
    e.raw('.section .rodata,"a"')
    e.raw(".p2align 6")
    e.raw(f".amdhsa_kernel {KNAME}")
    e.raw("  .amdhsa_next_free_vgpr 512")
    e.raw("  .amdhsa_next_free_sgpr 96")
    e.raw("  .amdhsa_accum_offset 256")
    e.raw("  .amdhsa_group_segment_fixed_size 0")
    e.raw("  .amdhsa_kernarg_size 48")
    e.raw("  .amdhsa_user_sgpr_count 2")
    e.raw("  .amdhsa_user_sgpr_kernarg_segment_ptr 1")
    e.raw("  .amdhsa_system_sgpr_workgroup_id_x 1")
    e.raw(".end_amdhsa_kernel")
    return e.text(), info

def show(gaps, tag):
    print(tag)
    for g, x in enumerate(gaps):
        print(f"  {g:2d}: " + " | ".join(it.name for it in x['D'] + x['V']))

if __name__ == "__main__":
    import argparse
    ap = argparse.ArgumentParser()
    ap.add_argument("-o", default="standalone__gqa_softmax__prompt.s")
    ap.add_argument("--stamps", default="")
    ap.add_argument("--show", action="store_true")
    ap.add_argument("--set", nargs="*", default=[], help="cfg overrides k=v")
    a = ap.parse_args()
    cfg = Cfg(stamps=a.stamps)
    for kv in a.set:
        k, v = kv.split("=", 1)
        setattr(cfg, k, eval(v))
    txt, info = gen(cfg)
    open(a.o, "w").write(txt)
    if a.show:
        show(info['A0'], "phase A"); show(info['B0'], "phase B")
    print("wrote", a.o, len(txt), "bytes")
```

```python
import sys, math, struct

KNAME = "standalone__gqa_softmax__prompt_kernel"
H, SEQ, D = 32, 2048, 192
ROWB = D * 2
TILE = 32
TILEB = TILE * ROWB
NT = SEQ // TILE
HEADB = SEQ * ROWB
CSCALE = math.log2(math.e) / math.sqrt(D)
OPAD = 400
def f2u(x): return struct.unpack('<I', struct.pack('<f', x))[0]

class Cfg:
    NS = 4
    THR = 65536.0
    stamps = ""
    qnt = True
    kvnt = False
    ont = False
    abl = ()
    edist = 2
    look = 2
    dmaK = (4, 8, 12)
    dmaV = (16, 20, 26)
    bar_gap = 1
    cinit = "0"
    qlds = True
    otouch = True
    zmfma = True
    cwarm = True
    def __init__(self, **kw):
        for k, v in kw.items(): setattr(self, k, v)

V_T0, V_T1, V_T2 = 1, 2, 3
V_L = 4
V_LT = 8
V_E = 12
V_KA = 20
V_VA = 22
V_DV = 26
V_X0, V_X1, V_X2 = 29, 30, 31
V_S = 32
V_P = 96
V_NM = 128
V_K = 144
V_V = 192
V_Q = 216
V_Y = 248

E_WA, E_SO = 1, 2
E_RA = (3, 253, 254)

def S(p, kb, qb): return V_S + p * 32 + (kb * 4 + qb) * 4
def P(p, qb): return V_P + p * 16 + qb * 4
def NM(qb): return V_NM + qb * 4
def KF(kb, s): return V_K + (kb * 6 + s) * 4
def VF(j): return V_V + j * 4
def vr(b, n=4): return f"v[{b}:{b+n-1}]"
def ar(b, n=4): return f"a[{b}:{b+n-1}]"
def O(qb, dt): return (qb * 12 + dt) * 4
def QF(qb, s):
    n = qb * 6 + s
    return ar(192 + 4 * n) if n < 16 else vr(V_Q + 4 * (n - 16))
def QTMP(qb, s):
    n = qb * 6 + s
    if n < 8: return V_S + 32 + 4 * n
    if n < 14: return V_V + 4 * (n - 8)
    if n < 16: return V_P + 16 + 4 * (n - 14)
    return V_Q + 4 * (n - 16)

S_K, S_V, S_O, S_Q = 8, 12, 16, 20
S_W = 24
S_KOFF = 25
S_VOFF = 26
S_CNT = 31
S_THR = 34
S_KW = 35
S_VW = 36
S_RET = 37
S_QW = 38
S_T0, S_T1, S_T2, S_T3 = 40, 41, 42, 43
S_C = 44
S_WS = 48
S_TS = 64

class Emit:
    def __init__(self): self.l = []; self.filt = None
    def __call__(self, s):
        if self.filt and self.filt(s): return
        self.l.append("    " + s)
    def lab(self, s): self.l.append(s + ":")
    def raw(self, s): self.l.append(s)
    def text(self): return "\n".join(self.l) + "\n"

class Item:
    def __init__(self, kind, text, target=0, earliest=0, pin=None, deps=(), name=""):
        self.kind = kind; self.text = text; self.target = target; self.earliest = earliest; self.pin = pin
        self.deps = list(deps); self.gap = None; self.name = name

def schedule(ngaps, items, look=2, light=()):
    gaps = [dict(D=[], V=[]) for _ in range(ngaps)]
    def cap(g):
        c = 1 if g in light else 2
        for it in gaps[g]['D'] + gaps[g]['V']:
            c -= 2 if it.kind == 'E' else 1
        return c
    for it in items:
        if it.pin is not None:
            g = gaps[it.pin]
            (g['D'] if it.kind in 'DT' else g['V']).append(it)
            it.gap = it.pin
    for g in range(ngaps):
        nD = [x.kind for x in gaps[g]['D']]
        assert nD.count('D') <= 1 and not ('D' in nD and 'T' in nD), (g, nD)
    rest = [it for it in items if it.pin is None]
    for g in range(ngaps):
        while True:
            c = cap(g)
            if c <= 0: break
            cands = []
            for it in rest:
                if it.gap is not None or it.earliest > g or it.target > g + look: continue
                if any(d.gap is None or d.gap + dist > g for d, dist in it.deps): continue
                if it.kind == 'E' and c < 2: continue
                cands.append(it)
            if not cands: break
            cands.sort(key=lambda x: x.target)
            it = cands[0]
            it.gap = g
            gaps[g]['V'].append(it)
    left = [it for it in rest if it.gap is None]
    assert not left, "unplaced: " + ", ".join(x.name for x in left)
    return gaps

def softmax_items(p, qb, t0, t1, edist, earliest=0):
    vals = [S(p, 0, qb) + i for i in range(4)] + [S(p, 1, qb) + i for i in range(4)]
    lt = V_LT + qb
    seq = []; prev_add = None; cons = {}
    for u in range(4):
        e0, e1 = V_E + 2 * u, V_E + 2 * u + 1
        E0 = Item('E', f"v_exp_f32 v{e0}, v{vals[2*u]}", name=f"E{qb}.{2*u}")
        E1 = Item('E', f"v_exp_f32 v{e1}, v{vals[2*u+1]}", name=f"E{qb}.{2*u+1}", deps=[(E0, 1)])
        if u == 0:
            A = [Item('V', f"v_add_f32 v{lt}, v{e0}, v{e1}", name=f"A{qb}.01", deps=[(E0, edist), (E1, edist)])]
        else:
            A0 = Item('V', f"v_add_f32 v{lt}, v{lt}, v{e0}", name=f"A{qb}.{2*u}", deps=[(E0, edist), (prev_add, 0)])
            A1 = Item('V', f"v_add_f32 v{lt}, v{lt}, v{e1}", name=f"A{qb}.{2*u+1}", deps=[(E1, edist), (A0, 0)])
            A = [A0, A1]
        prev_add = A[-1]
        C = Item('V', f"v_cvt_pk_bf16_f32 v{P(p,qb)+u}, v{e0}, v{e1}", name=f"C{qb}.{u}", deps=[(E0, edist), (E1, edist)])
        seq += [E0, E1] + A + [C]
        cons[u] = (E0, E1, A, C)
    tot = sum(2 if it.kind == 'E' else 1 for it in seq)
    acc = 0
    for it in seq:
        it.target = t0 + (t1 - t0) * acc / tot
        it.earliest = earliest
        acc += 2 if it.kind == 'E' else 1
    return seq, cons

def link_pairs(allpairs):
    last = {}
    for pr, (E0, E1, A, C) in allpairs:
        if pr in last:
            pA, pC = last[pr]
            for a in pA: E0.deps.append((a, 0))
            E0.deps.append((pC, 0))
        last[pr] = (A, C)

def gen(cfg):
    NS = cfg.NS; U = NS
    assert U % 2 == 0 and NT % U == 0
    KBASE = 0
    VBASE = NS * TILEB
    OBASE = 2 * NS * TILEB
    LDS = OBASE + 4 * 2 * 16 * OPAD
    assert LDS <= 163840
    e = Emit()
    e.raw(f"; @launch grid=(256,1,1) block=(256,1,1) lds={LDS}")
    e.raw('.amdgcn_target "amdgcn-amd-amdhsa--gfx950"')
    e.raw(".text")
    e.raw(f".globl {KNAME}")
    e.raw(".p2align 8")
    e.raw(f".type {KNAME},@function")
    e.lab(KNAME)
    def stamp(k, mode):
        if cfg.stamps == mode: e(f"s_memtime s[{76+2*k}:{77+2*k}]")
    KVF = " nt" if cfg.kvnt else ""
    e("s_cmp_ge_u32 s2, 256")
    e("s_cbranch_scc1 L_end")
    e("s_load_dwordx4 s[4:7], s[0:1], 0")
    e("s_load_dwordx4 s[56:59], s[0:1], 16")
    if cfg.stamps:
        e(f"s_load_dwordx2 s[60:61], s[0:1], {32 if cfg.stamps == 'dbg' else 40}")
        e(f"s_memtime s[{S_TS}:{S_TS+1}]")
        e(f"s_memrealtime s[{S_TS+2}:{S_TS+3}]")
    if cfg.cwarm:
        e("s_getpc_b64 s[46:47]")
        e(f"v_lshlrev_b32 v{V_Y+6}, 7, v0")
        e(f"v_min_u32 v{V_Y+6}, L_end-{KNAME}-16, v{V_Y+6}")
        e(f"global_load_dword v{V_Y+7}, v{V_Y+6}, s[46:47]")
        cw = True
    e(f"v_and_b32 v{V_T0}, 63, v0")
    e(f"v_lshrrev_b32 v{V_T1}, 6, v0")
    e(f"v_and_b32 v{V_X0}, 15, v0")
    e(f"v_readfirstlane_b32 s{S_W}, v{V_T1}")
    e(f"v_lshrrev_b32 v{V_X1}, 4, v{V_T0}")
    e(f"s_and_b32 s{S_T0}, s2, 7")
    e(f"s_lshl_b32 s{S_T0}, s{S_T0}, 2")
    e(f"s_lshr_b32 s{S_T1}, s2, 6")
    e(f"s_add_u32 s{S_T0}, s{S_T0}, s{S_T1}")
    e(f"s_lshr_b32 s{S_T1}, s2, 3")
    e(f"s_and_b32 s{S_T1}, s{S_T1}, 7")
    e(f"s_mul_i32 s{S_T2}, s{S_T0}, {HEADB}")
    e(f"s_mul_i32 s{S_T3}, s{S_T1}, {256*ROWB}")
    e(f"s_mul_i32 s{S_T1}, s{S_W}, {64*ROWB}")
    e(f"s_add_u32 s{S_T3}, s{S_T3}, s{S_T1}")
    e(f"s_add_u32 s{S_T3}, s{S_T3}, s{S_T2}")
    e(f"s_mul_i32 s{S_T1}, s{S_W}, 192")
    for ii in range(3):
        e(f"v_add_u32 v{V_T1}, s{S_T1}, v{V_T0}")
        if ii: e(f"v_add_u32 v{V_T1}, {64*ii}, v{V_T1}")
        e(f"v_mul_u32_u24 v{V_T2}, 2731, v{V_T1}")
        e(f"v_lshrrev_b32 v{V_T2}, 16, v{V_T2}")
        e(f"v_mul_u32_u24 v{V_X2}, 24, v{V_T2}")
        e(f"v_sub_u32 v{V_T1}, v{V_T1}, v{V_X2}")
        e(f"v_and_b32 v{V_X2}, 6, v{V_T2}")
        e(f"v_xor_b32 v{V_T1}, v{V_T1}, v{V_X2}")
        e(f"v_lshlrev_b32 v{V_T1}, 4, v{V_T1}")
        e(f"v_mul_u32_u24 v{V_T2}, {ROWB}, v{V_T2}")
        e(f"v_add_u32 v{V_DV+ii}, v{V_T1}, v{V_T2}")
        if ii: e(f"v_subrev_u32 v{V_DV+ii}, {1024*ii}, v{V_DV+ii}")
    if cfg.qlds:
        e(f"s_mul_i32 s{S_T1}, s{S_W}, 3072")
        for ii in range(3): e(f"v_subrev_u32 v{V_Y+ii}, s{S_T1}, v{V_DV+ii}")
        e(f"s_mul_i32 s{S_QW}, s{S_W}, {2*16*OPAD}")
        e(f"s_add_u32 s{S_QW}, s{S_QW}, {OBASE}")
    else:
        e(f"v_mul_u32_u24 v{V_Y}, {ROWB}, v{V_X0}")
        e(f"v_lshl_add_u32 v{V_Y}, v{V_X1}, 4, v{V_Y}")
    e(f"s_mul_i32 s{S_T1}, s{S_W}, 3072")
    e(f"s_add_u32 s{S_KW}, s{S_T1}, {KBASE}")
    e(f"s_add_u32 s{S_VW}, s{S_T1}, {VBASE}")
    e("s_waitcnt lgkmcnt(0)")
    stamp(0, 'pro2')
    def srd(sr, lo, hi, off, nrec):
        e(f"s_add_u32 s{sr}, s{lo}, s{off}")
        e(f"s_addc_u32 s{sr+1}, s{hi}, 0")
        e(f"s_mov_b32 s{sr+2}, {nrec}")
        e(f"s_mov_b32 s{sr+3}, 0x20000")
    srd(S_K, 6, 7, S_T2, HEADB)
    vq = ["CW"] if cfg.cwarm else []
    def dma(srd_, t, wreg, tag):
        e(f"s_mov_b32 s{S_T1}, {t*TILEB}")
        e(f"s_add_u32 m0, s{wreg}, {(t % NS)*TILEB}")
        e("s_nop 0")
        for ii in range(3):
            o = f" offset:{1024*ii}" if ii else ""
            e(f"buffer_load_dwordx4 v{V_DV+ii}, s[{srd_}:{srd_+3}], s{S_T1} offen{o}{KVF} lds")
            vq.append(tag)
    def dmaK(t): dma(S_K, t, S_KW, f"K{t}")
    def dmaV(t): dma(S_V, t, S_VW, f"V{t}")
    def vwait(tag):
        idx = max(i for i, t in enumerate(vq) if t == tag)
        e(f"s_waitcnt vmcnt({len(vq) - 1 - idx})")
    QNT = " nt" if cfg.qnt else ""
    def qload1(qb, s):
        if cfg.qlds:
            half, ii = s // 3, s % 3
            if ii == 0:
                e(f"s_mov_b32 s{S_T0}, {qb*16*ROWB + half*3072}")
                e(f"s_add_u32 m0, s{S_QW}, {(qb % 2)*16*OPAD + half*3072}")
                e("s_nop 0")
            o = f" offset:{1024*ii}" if ii else ""
            e(f"buffer_load_dwordx4 v{V_Y+ii}, s[{S_Q}:{S_Q+3}], s{S_T0} offen{o}{QNT} lds")
            vq.append(f"Q{qb}.{s}")
            return
        so = "0" if qb == 0 else f"s{S_T0}"
        if qb and True: e(f"s_mov_b32 s{S_T0}, {qb*16*ROWB}")
        e(f"buffer_load_dwordx4 {vr(QTMP(qb,s))}, v{V_Y}, s[{S_Q}:{S_Q+3}], {so} offen offset:{s*64}" + QNT)
        vq.append(f"Q{qb}.{s}")
    dmaK(0)
    srd(S_Q, 4, 5, S_T3, 64 * ROWB)
    for s in range(6): qload1(0, s)
    stamp(1, 'pro2')
    srd(S_V, 56, 57, S_T2, HEADB)
    srd(S_O, 58, 59, S_T3, 64 * ROWB)
    e(f"v_and_b32 v{V_T1}, 6, v{V_X0}")
    e(f"v_xor_b32 v{V_T1}, v{V_T1}, v{V_X1}")
    e(f"v_lshlrev_b32 v{V_T1}, 4, v{V_T1}")
    e(f"v_mul_u32_u24 v{V_T2}, {ROWB}, v{V_X0}")
    e(f"v_add_u32 v{V_KA}, v{V_T1}, v{V_T2}")
    if KBASE: e(f"v_add_u32 v{V_KA}, {KBASE}, v{V_KA}")
    e(f"v_xor_b32 v{V_KA+1}, 64, v{V_KA}")
    e(f"v_lshrrev_b32 v{V_T1}, 2, v{V_X0}")
    e(f"v_lshl_add_u32 v{V_T1}, v{V_X1}, 2, v{V_T1}")
    e(f"v_and_b32 v{V_T2}, 6, v{V_T1}")
    e(f"v_bfe_u32 v{V_X2}, v{V_X0}, 1, 1")
    e(f"v_or_b32 v{V_T2}, v{V_T2}, v{V_X2}")
    e(f"v_lshlrev_b32 v{V_T2}, 4, v{V_T2}")
    e(f"v_and_b32 v{V_X2}, 1, v{V_X0}")
    e(f"v_lshl_add_u32 v{V_T2}, v{V_X2}, 3, v{V_T2}")
    e(f"v_mul_u32_u24 v{V_T1}, {ROWB}, v{V_T1}")
    e(f"v_add_u32 v{V_VA}, v{V_T1}, v{V_T2}")
    e(f"v_add_u32 v{V_VA}, {VBASE}, v{V_VA}")
    for j in range(1, 4):
        e(f"v_xor_b32 v{V_VA+j}, {j<<5}, v{V_VA}")
    if cfg.otouch:
        e(f"buffer_load_dword v{V_Y+7}, off, s[{S_O}:{S_O+3}], 0")
        vq.append("OT")
    if cfg.qlds:
        e(f"v_add_u32 v{V_Y+3}, s{S_QW}, v{V_KA}")
        e(f"v_add_u32 v{V_Y+4}, s{S_QW}, v{V_KA+1}")
    e(f"s_mul_i32 s{S_T0}, s{S_W}, {2*16*OPAD}")
    e(f"s_add_u32 s{S_T0}, s{S_T0}, {OBASE}")
    e(f"v_mul_u32_u24 v{E_WA}, {OPAD}, v{V_X0}")
    e(f"v_lshl_add_u32 v{E_WA}, v{V_X1}, 3, v{E_WA}")
    e(f"v_add_u32 v{E_WA}, s{S_T0}, v{E_WA}")
    e(f"v_and_b32 v{V_X0}, 63, v0")
    e(f"v_lshlrev_b32 v{E_SO}, 4, v{V_X0}")
    for n in range(3):
        e(f"v_add_u32 v{V_X1}, {64*n}, v{V_X0}")
        e(f"v_mul_u32_u24 v{V_X2}, 2731, v{V_X1}")
        e(f"v_lshrrev_b32 v{V_X2}, 16, v{V_X2}")
        e(f"v_add_u32 v{V_X1}, v{V_X1}, v{V_X2}")
        e(f"v_lshlrev_b32 v{E_RA[n]}, 4, v{V_X1}")
        e(f"v_add_u32 v{E_RA[n]}, s{S_T0}, v{E_RA[n]}")
    if cfg.zmfma:
        for i in range(4): e(f"v_mov_b32 v{V_E+i}, 0")
        e("s_nop 1")
        for i in range(12): e(f"v_mfma_f32_32x32x16_bf16 a[{16*i}:{16*i+15}], {vr(V_E)}, {vr(V_E)}, 0")
    else:
        for i in range(192): e(f"v_accvgpr_write_b32 a{i}, 0")
    for i in range(4): e(f"v_mov_b32 v{V_L+i}, 0")
    e(f"s_mov_b32 s{S_C}, {hex(f2u(CSCALE))}")
    e(f"s_mov_b32 s{S_THR}, {hex(f2u(cfg.THR))}")
    e(f"s_mov_b32 s{S_KOFF}, {NS*TILEB}")
    e(f"s_mov_b32 s{S_VOFF}, {(NS-1)*TILEB}")
    e(f"s_mov_b32 s{S_CNT}, 0")
    stamp(2, 'pro2')
    dmaK(1)
    for s in range(6): qload1(1, s)
    stamp(3, 'pro2')
    vwait("K0")
    e("s_barrier")
    stamp(4, 'pro2')
    def kread(kb, s, stage):
        off = stage * TILEB + kb * 16 * ROWB + (s >> 1) * 128
        return f"ds_read_b128 {vr(KF(kb,s))}, v{V_KA + (s & 1)} offset:{off}"
    def vread(dt, hh, stage, dst=None):
        off = stage * TILEB + hh * 16 * ROWB + (dt >> 2) * 128
        b = (VF(dt % 6) if dst is None else dst) + 2 * hh
        return f"ds_read_b64_tr_b16 v[{b}:{b+1}], v{V_VA + (dt & 3)} offset:{off}"
    for kb in range(2):
        for s in range(6): e(kread(kb, s, 0))
    def xlane(op, x, t):
        e(f"v_mov_b32 v{t}, v{x}")
        e("s_nop 1")
        e(f"v_permlane16_swap_b32 v{x}, v{t}")
        e("s_nop 1")
        e(f"{op} v{x}, v{x}, v{t}")
        e(f"v_mov_b32 v{t}, v{x}")
        e("s_nop 1")
        e(f"v_permlane32_swap_b32 v{x}, v{t}")
        e("s_nop 1")
        e(f"{op} v{x}, v{x}, v{t}")
    def softmax_plain(p, qb):
        vals = [S(p, 0, qb) + i for i in range(4)] + [S(p, 1, qb) + i for i in range(4)]
        lt = V_LT + qb
        for k in range(8): e(f"v_exp_f32 v{V_E+k}, v{vals[k]}")
        e("s_nop 0")
        e(f"v_add_f32 v{lt}, v{V_E}, v{V_E+1}")
        for k in range(2, 8): e(f"v_add_f32 v{lt}, v{lt}, v{V_E+k}")
        for u in range(4):
            e(f"v_cvt_pk_bf16_f32 v{P(p,qb)+u}, v{V_E+2*u}, v{V_E+2*u+1}")
    ring = [("V", 0)]
    for t in range(2, NS): ring += [("K", t), ("V", t - 1)]
    pend = [[("Q", 2, s)] for s in range(6)] + [[("Q", 3, s)] for s in range(6)]
    ringsched = {}
    for n, r in enumerate(ring): ringsched.setdefault(n * 12 // len(ring), []).append(r)
    for k in range(12): pend.append(ringsched.get(k, []))
    def issue(lst):
        for it in lst:
            if it[0] == "Q": qload1(it[1], it[2])
            elif it[0] == "K": dmaK(it[1])
            else: dmaV(it[1])
    def qk0(qb, s):
        for kb in range(2):
            c = "0" if s == 0 else vr(S(0, kb, qb))
            e(f"v_mfma_f32_16x16x32_bf16 {vr(S(0,kb,qb))}, {vr(KF(kb,s))}, {QF(qb,s)}, {c}")
    for qb in range(4):
        if qb == 2:
            vwait("K1")
            e("s_barrier")
        if cfg.qlds:
            vwait(f"Q{qb}.5")
            stamp(2 + qb, 'pro')
            for s in range(6):
                off = (qb % 2) * 16 * OPAD + (s >> 1) * 128
                e(f"ds_read_b128 {vr(QTMP(qb,s))}, v{V_Y + 3 + (s & 1)} offset:{off}")
            e("s_waitcnt lgkmcnt(0)")
        for s in range(6):
            issue(pend.pop(0))
            if not cfg.qlds:
                vwait(f"Q{qb}.{s}")
                if s == 0: stamp(2 + qb, 'pro')
            src = QTMP(qb, s); n = qb * 6 + s
            for r in range(4):
                x = src + r
                t0, t1, t2 = V_E + (3 * r) % 6, V_E + (3 * r) % 6 + 1, V_E + (3 * r) % 6 + 2
                e(f"v_and_b32 v{t0}, 0xffff0000, v{x}")
                e(f"v_lshlrev_b32 v{t1}, 16, v{x}")
                e(f"v_mul_f32 v{t0}, s{S_C}, v{t0}")
                e(f"v_mul_f32 v{t1}, s{S_C}, v{t1}")
                if n < 16:
                    e(f"v_cvt_pk_bf16_f32 v{t2}, v{t1}, v{t0}")
                    e(f"v_accvgpr_write_b32 a{192+4*n+r}, v{t2}")
                else:
                    e(f"v_cvt_pk_bf16_f32 v{x}, v{t1}, v{t0}")
                if r == 1 and s > 0:
                    if qb == 0 and s == 1: e("s_waitcnt lgkmcnt(0)")
                    qk0(qb, s - 1)
        e("s_nop 1")
        qk0(qb, 5)
        if qb == 3:
            for s in range(6): e(kread(0, s, 1 % NS))
        e("s_nop 7")
        e("s_nop 1")
        a = S(0, 0, qb); b = S(0, 1, qb); m = V_X0
        e(f"v_max3_f32 v{m}, v{a}, v{a+1}, v{a+2}")
        e(f"v_max3_f32 v{m}, v{m}, v{a+3}, v{b}")
        e(f"v_max3_f32 v{m}, v{m}, v{b+1}, v{b+2}")
        e(f"v_max_f32 v{m}, v{m}, v{b+3}")
        xlane("v_max_f32", m, V_X1)
        for r in range(4):
            e(f"v_sub_f32 v{NM(qb)+r}, 0, v{m}")
        for r in range(4):
            e(f"v_sub_f32 v{a+r}, v{a+r}, v{m}")
            e(f"v_sub_f32 v{b+r}, v{b+r}, v{m}")
        if qb < 2: softmax_plain(0, qb)
    assert not pend
    e("s_waitcnt lgkmcnt(0)")
    if cfg.stamps:
        e(f"s_memtime s[{S_TS+4}:{S_TS+5}]")
        e("s_waitcnt lgkmcnt(0)")

    VMW = 3 + 6 * (NS - 3)
    fb_sites = {0: [], 1: []}

    def phaseA(u, last):
        p = u % 2
        items = []; pairs = []
        if not last:
            for s in range(6):
                items.append(Item('D', kread(1, s, (u + 1) % NS), pin=2 * s, name=f"K1.{s}"))
            for dt in range(6):
                for hh in range(2):
                    items.append(Item('T', vread(dt, hh, u % NS), pin=24 + 3 * dt, name=f"V{dt}.{hh}"))
        else:
            for dt in range(12):
                dst = VF(dt) if dt < 6 else KF(0, dt - 6)
                for hh in range(2):
                    items.append(Item('T', vread(dt, hh, u % NS, dst), pin=4 + 3 * dt, name=f"V{dt}.{hh}"))
        s2, c2 = softmax_items(p, 2, 0, 20, cfg.edist)
        s3, c3 = softmax_items(p, 3, 20, 40, cfg.edist)
        for k in range(4): pairs.append((k, c2[k]))
        for k in range(4): pairs.append((k, c3[k]))
        link_pairs(pairs)
        items += s2 + s3
        lastA3 = [it for it in s3 if it.name == "A3.7"][0]
        lastA2 = [it for it in s2 if it.name == "A2.7"][0]
        M1 = Item('V', f"v_max3_f32 v{V_X0}, v{V_LT}, v{V_LT+1}, v{V_LT+2}", target=43, deps=[(lastA2, 0)], name="M1")
        M2 = Item('V', f"v_max_f32 v{V_X0}, v{V_X0}, v{V_LT+3}", target=44, deps=[(lastA3, 0), (M1, 0)], name="M2")
        CM = Item('V', f"v_cmp_nge_f32 vcc, s{S_THR}, v{V_X0}", target=45, deps=[(M2, 0)], name="CMP")
        items += [M1, M2, CM]
        light = set() if last else set(cfg.dmaK) | set(cfg.dmaV)
        gaps = schedule(48, items, cfg.look, light)
        assert CM.gap <= 46, CM.gap
        sh = {g: [] for g in range(48)}
        sh[cfg.bar_gap - 1].append(f"s_waitcnt vmcnt({VMW})")
        sh[cfg.bar_gap].append("s_barrier")
        tag = 'L' if last else str(u)
        if not last:
            sh[cfg.dmaK[0] - 2].append(f"s_add_u32 m0, s{S_KW}, {(u % NS)*TILEB}")
            for ii in range(3):
                o = f" offset:{1024*ii}" if ii else ""
                sh[cfg.dmaK[ii]].append(f"buffer_load_dwordx4 v{V_DV+ii}, s[{S_K}:{S_K+3}], s{S_KOFF} offen{o}{KVF} lds")
            sh[cfg.dmaV[0] - 2].append(f"s_add_u32 m0, s{S_VW}, {((u - 1) % NS)*TILEB}")
            for ii in range(3):
                o = f" offset:{1024*ii}" if ii else ""
                sh[cfg.dmaV[ii]].append(f"buffer_load_dwordx4 v{V_DV+ii}, s[{S_V}:{S_V+3}], s{S_VOFF} offen{o}{KVF} lds")
            sh[28].append(f"s_mov_b32 s{S_VOFF}, s{S_KOFF}")
            sh[29].append(f"s_add_u32 s{S_KOFF}, s{S_KOFF}, {TILEB}")
            sh[30].append(f"s_min_u32 s{S_KOFF}, s{S_KOFF}, {(NT-1)*TILEB}")
            sh[23].append("s_waitcnt lgkmcnt(0)")
            if u == U - 2:
                sh[32].append(f"s_add_u32 s{S_CNT}, s{S_CNT}, {U}")
                sh[33].append(f"s_cmp_ge_u32 s{S_CNT}, {NT}")
        sh[46].append("s_waitcnt lgkmcnt(0)")
        sh[47].append(f"s_cbranch_vccnz L_call{tag}")
        for g in range(48):
            assert len(sh[g]) <= 1, (g, sh[g])
            if not last:
                kb, qb, s = g // 24, (g % 24) // 6, g % 6
                d = vr(S(1 - p, kb, qb))
                c = (vr(NM(qb)) if 'c0' not in cfg.abl else cfg.cinit) if s == 0 else d
                e(f"v_mfma_f32_16x16x32_bf16 {d}, {vr(KF(kb,s))}, {QF(qb,s)}, {c}")
            for x in sh[g]: e(x)
            if g == 47: e.lab(f"L_ret{tag}")
            for it in gaps[g]['D'] + gaps[g]['V']: e(it.text)
            if last and any(it.kind == 'E' for it in gaps[g]['V']): e("s_nop 0")
        return gaps

    def phaseB(u):
        p = u % 2
        items = []
        items += [Item('V', f"v_add_f32 v{V_L+q}, v{V_L+q}, v{V_LT+q}", pin=q // 2, name=f"L{q}") for q in range(4)]
        for dt in range(6, 12):
            for hh in range(2):
                items.append(Item('T', vread(dt, hh, u % NS), pin=4 * (dt - 6) + 4, name=f"V{dt}.{hh}"))
        for s in range(6):
            items.append(Item('D', kread(0, s, (u + 2) % NS), pin=26 + 2 * s, name=f"K0.{s}"))
        s0, c0 = softmax_items(1 - p, 0, 2, 23, cfg.edist, earliest=2)
        s1, c1 = softmax_items(1 - p, 1, 23, 44, cfg.edist, earliest=2)
        pairs = [(k, c0[k]) for k in range(4)] + [(k, c1[k]) for k in range(4)]
        link_pairs(pairs)
        items += s0 + s1
        gaps = schedule(48, items, cfg.look)
        sh = {g: [] for g in range(48)}
        order = [(g, it) for g in range(48) for it in gaps[g]['D']]
        def wfor(name, at):
            idx = max(i for i, (g, it) in enumerate(order) if it.name == name)
            assert order[idx][0] < at
            return sum(1 for i, (g, it) in enumerate(order) if i > idx and g < at)
        sh[23].append(f"s_waitcnt lgkmcnt({wfor('V8.1', 23)})")
        sh[35].append(f"s_waitcnt lgkmcnt({wfor('V11.1', 35)})")
        sh[46].append("s_waitcnt lgkmcnt(0)")
        for g in range(48):
            dt, qb = g // 4, g % 4
            adt, aqb = dt, qb
            if 'pvc2' in cfg.abl: adt, aqb = (dt // 2) * 2 + (u % 2), (qb // 2) * 2 + (dt % 2); adt = dt - (dt % 2) + (u % 2)
            if 'pvc4' in cfg.abl: adt, aqb = dt, u % 4
            if 'pvc2b' in cfg.abl:
                d0 = 2 * (g // 8); aqb = (g // 2) % 4; dt = d0 + g % 2; adt = d0 + (u % 2); qb = (aqb + 2 * (g % 2)) % 4
            e(f"v_mfma_f32_16x16x32_bf16 {ar(O(aqb,adt))}, {vr(VF(dt%6))}, {vr(P(p,qb))}, {ar(O(aqb,adt))}")
            for x in sh[g]: e(x)
            for it in gaps[g]['D'] + gaps[g]['V']: e(it.text)
            if g == 47:
                if u == U - 2: e("s_cbranch_scc1 L_tail")
                if u == U - 1: e("s_branch L_loop")
        return gaps

    def fallback(p, tag, last):
        e.lab(f"L_fb{tag}")
        e("s_nop 7"); e("s_nop 7")
        for qb in range(4):
            a = S(p, 0, qb); b = S(p, 1, qb); m = V_X0
            e(f"v_max3_f32 v{m}, v{a}, v{a+1}, v{a+2}")
            e(f"v_max3_f32 v{m}, v{m}, v{a+3}, v{b}")
            e(f"v_max3_f32 v{m}, v{m}, v{b+1}, v{b+2}")
            e(f"v_max_f32 v{m}, v{m}, v{b+3}")
            xlane("v_max_f32", m, V_X1)
            e(f"v_max_f32 v{m}, 0, v{m}")
            for r in range(4):
                e(f"v_sub_f32 v{NM(qb)+r}, v{NM(qb)+r}, v{m}")
                e(f"v_sub_f32 v{a+r}, v{a+r}, v{m}")
                e(f"v_sub_f32 v{b+r}, v{b+r}, v{m}")
                if not last:
                    e(f"v_sub_f32 v{S(1-p,0,qb)+r}, v{S(1-p,0,qb)+r}, v{m}")
                    e(f"v_sub_f32 v{S(1-p,1,qb)+r}, v{S(1-p,1,qb)+r}, v{m}")
            e(f"v_sub_f32 v{V_X1}, 0, v{m}")
            e(f"v_exp_f32 v{V_X1}, v{V_X1}")
            e("s_nop 0")
            e(f"v_mul_f32 v{V_L+qb}, v{V_L+qb}, v{V_X1}")
            for dt in range(12):
                for r in range(4):
                    e(f"v_accvgpr_read_b32 v{V_X2}, a{O(qb,dt)+r}")
                    e(f"v_mul_f32 v{V_X2}, v{V_X2}, v{V_X1}")
                    e(f"v_accvgpr_write_b32 a{O(qb,dt)+r}, v{V_X2}")
            softmax_plain(p, qb)
        e("s_nop 3")

    def filt(t):
        a = cfg.abl
        if 'nodma' in a and t.startswith('buffer_load'): return True
        if 'nods' in a and t.startswith('ds_read'): return True
        if 'noexp' in a and t.startswith('v_exp'): return True
        if 'noadd' in a and t.startswith('v_add_f32'): return True
        if 'nocvt' in a and t.startswith('v_cvt_pk'): return True
        if 'nobar' in a and t.startswith('s_barrier'): return True
        if 'nochk' in a and (t.startswith('v_max') or t.startswith('v_cmp') or t.startswith('s_cbranch_vcc')): return True
        return False
    e(".p2align 6")
    e.lab("L_loop")
    e.filt = filt if cfg.abl else None
    info = {}
    for u in range(U):
        info[f"A{u}"] = phaseA(u, False)
        info[f"B{u}"] = phaseB(u)
    e.filt = None
    e.lab("L_tail")
    phaseA(U - 1, True)
    if cfg.stamps:
        e(f"s_memtime s[{S_TS+6}:{S_TS+7}]")
    pl = (U - 1) % 2
    for qb in range(4):
        e(f"v_add_f32 v{V_L+qb}, v{V_L+qb}, v{V_LT+qb}")
    def pv_last(qb, dt):
        vf = VF(dt) if dt < 6 else KF(0, dt - 6)
        return f"v_mfma_f32_16x16x32_bf16 {ar(O(qb,dt))}, {vr(vf)}, {vr(P(pl,qb))}, {ar(O(qb,dt))}"
    for dt in range(12): e(pv_last(0, dt))
    for sw in ("v_permlane16_swap_b32", "v_permlane32_swap_b32"):
        for qb in range(4): e(f"v_mov_b32 v{V_E+qb}, v{V_L+qb}")
        e("s_nop 0")
        for qb in range(4): e(f"{sw} v{V_L+qb}, v{V_E+qb}")
        e("s_nop 0")
        for qb in range(4): e(f"v_add_f32 v{V_L+qb}, v{V_L+qb}, v{V_E+qb}")
    for qb in range(4): e(f"v_rcp_f32 v{V_L+qb}, v{V_L+qb}")
    def epi_items(qb):
        L = []
        boff = (qb % 2) * 16 * OPAD
        tb = V_S + (qb % 2) * 32
        for dt in range(12):
            t = tb + (dt % 4) * 6
            for r in range(4): L.append(f"v_accvgpr_read_b32 v{t+r}, a{O(qb,dt)+r}")
            for r in range(4): L.append(f"v_mul_f32 v{t+r}, v{t+r}, v{V_L+qb}")
            L.append(f"v_cvt_pk_bf16_f32 v{t+4}, v{t}, v{t+1}")
            L.append(f"v_cvt_pk_bf16_f32 v{t+5}, v{t+2}, v{t+3}")
            L.append(f"ds_write_b64 v{E_WA}, v[{t+4}:{t+5}] offset:{boff + dt*32}")
        L.append("s_waitcnt lgkmcnt(0)")
        rb = V_P + (qb % 2) * 0
        rb = V_V if qb == 3 else V_Q + (qb % 2) * 0
        rb = V_Q if qb % 2 == 0 else V_NM
        regs = [V_Q + 4 * k for k in range(6)] if qb % 2 == 0 else [V_NM, V_NM + 4, V_NM + 8, V_NM + 12, V_Q + 24, V_Q + 28]
        for n in range(6):
            L.append(f"ds_read_b128 {vr(regs[n])}, v{E_RA[n % 3]} offset:{boff + (n // 3) * 8 * OPAD}")
        for n in range(6):
            L.append(f"s_waitcnt lgkmcnt({5-n})")
            L.append(f"s_mov_b32 s{S_T1}, {qb*16*ROWB + (n // 3) * 3072}")
            o = (n % 3) * 1024
            L.append(f"buffer_store_dwordx4 {vr(regs[n])}, v{E_SO}, s[{S_O}:{S_O+3}], s{S_T1} offen offset:{o}" + (" nt" if cfg.ont else ""))
        return L
    for qb in range(4):
        L = epi_items(qb)
        m = [pv_last(qb + 1, dt) for dt in range(12)] if qb < 3 else []
        step = max(1, (len(L) - 20) // 12)
        k = 0
        for n, ins in enumerate(L):
            if m and n % step == 0:
                e(m.pop(0))
            e(ins)
        for x in m: e(x)
        if qb < 3: e("s_nop 7")
    if cfg.stamps:
        e("s_waitcnt vmcnt(0)")
        e(f"s_memtime s[{S_TS+8}:{S_TS+9}]")
        e(f"s_memrealtime s[{S_TS+10}:{S_TS+11}]")
        e("s_waitcnt lgkmcnt(0)")
        e(f"s_mov_b32 s{S_WS}, s60"); e(f"s_mov_b32 s{S_WS+1}, s61"); e(f"s_mov_b32 s{S_WS+2}, 0x100000"); e(f"s_mov_b32 s{S_WS+3}, 0x20000")
        e(f"s_sub_u32 s{S_T0}, s{S_TS+8}, s{S_TS}"); e(f"v_mov_b32 v2, s{S_T0}")
        e(f"s_sub_u32 s{S_T0}, s{S_TS+10}, s{S_TS+2}"); e(f"v_mov_b32 v3, s{S_T0}")
        if cfg.stamps in ('pro', 'pro2'):
            for k in range(6):
                e(f"s_sub_u32 s{S_T0}, s{76+2*k}, s{S_TS}"); e(f"v_mov_b32 v{4+k}, s{S_T0}")
        else:
            e(f"s_sub_u32 s{S_T0}, s{S_TS+4}, s{S_TS}"); e(f"v_mov_b32 v4, s{S_T0}")
            e(f"s_sub_u32 s{S_T0}, s{S_TS+6}, s{S_TS+4}"); e(f"v_mov_b32 v5, s{S_T0}")
            e(f"s_sub_u32 s{S_T0}, s{S_TS+8}, s{S_TS+6}"); e(f"v_mov_b32 v6, s{S_T0}")
            for j in (7, 8, 9): e(f"v_mov_b32 v{j}, 0")
        if cfg.stamps == 'dbg':
            e(f"s_mov_b32 s{S_WS+2}, 64")
            e("s_mov_b32 s3, 0x1000")
            e("s_cmp_eq_u32 s2, 0"); e("s_cselect_b32 s3, 0, s3")
            e("s_cmp_eq_u32 s2, 77"); e("s_cselect_b32 s3, 20, s3")
            e("s_cmp_eq_u32 s2, 200"); e("s_cselect_b32 s3, 40, s3")
        else:
            e("s_lshl_b32 s3, s2, 5")
        e("v_mov_b32 v10, s3")
        e("v_cmp_eq_u32 vcc, 0, v0")
        e("s_and_saveexec_b64 s[62:63], vcc")
        e("s_cbranch_execz L_end")
        e(f"buffer_store_dwordx4 v[2:5], v10, s[{S_WS}:{S_WS+3}], 0 offen")
        if cfg.stamps == 'dbg':
            e(f"buffer_store_dword v6, v10, s[{S_WS}:{S_WS+3}], 0 offen offset:16")
        else:
            e(f"buffer_store_dwordx4 v[6:9], v10, s[{S_WS}:{S_WS+3}], 0 offen offset:16")
    e.lab("L_end")
    e("s_endpgm")
    for u in range(U):
        e.lab(f"L_call{u}")
        e(f"s_mov_b32 s{S_RET}, {u}")
        e(f"s_branch L_fb{u % 2}")
    e.lab("L_callL")
    e("s_branch L_fbL")
    for p in range(2):
        fallback(p, str(p), False)
        sites = [u for u in range(U) if u % 2 == p]
        for u in sites[:-1]:
            e(f"s_cmp_eq_u32 s{S_RET}, {u}")
            e(f"s_cbranch_scc1 L_retx{u}")
        e(f"s_branch L_retx{sites[-1]}")
    for u in range(U):
        e.lab(f"L_retx{u}")
        if u == U - 2: e(f"s_cmp_ge_u32 s{S_CNT}, {NT}")
        e(f"s_branch L_ret{u}")
    fallback(pl, "L", True)
    e("s_branch L_retL")
    e.raw('.section .rodata,"a"')
    e.raw(".p2align 6")
    e.raw(f".amdhsa_kernel {KNAME}")
    e.raw("  .amdhsa_next_free_vgpr 512")
    e.raw("  .amdhsa_next_free_sgpr 96")
    e.raw("  .amdhsa_accum_offset 256")
    e.raw("  .amdhsa_group_segment_fixed_size 0")
    e.raw("  .amdhsa_kernarg_size 48")
    e.raw("  .amdhsa_user_sgpr_count 2")
    e.raw("  .amdhsa_user_sgpr_kernarg_segment_ptr 1")
    e.raw("  .amdhsa_system_sgpr_workgroup_id_x 1")
    e.raw(".end_amdhsa_kernel")
    return e.text(), info

def show(gaps, tag):
    print(tag)
    for g, x in enumerate(gaps):
        print(f"  {g:2d}: " + " | ".join(it.name for it in x['D'] + x['V']))

if __name__ == "__main__":
    import argparse
    ap = argparse.ArgumentParser()
    ap.add_argument("-o", default="standalone__gqa_softmax__prompt.s")
    ap.add_argument("--stamps", default="")
    ap.add_argument("--show", action="store_true")
    ap.add_argument("--set", nargs="*", default=[], help="cfg overrides k=v")
    a = ap.parse_args()
    cfg = Cfg(stamps=a.stamps)
    for kv in a.set:
        k, v = kv.split("=", 1)
        setattr(cfg, k, eval(v))
    txt, info = gen(cfg)
    open(a.o, "w").write(txt)
    if a.show:
        show(info['A0'], "phase A"); show(info['B0'], "phase B")
    print("wrote", a.o, len(txt), "bytes")
```

```python
import sys, math, struct, re
import attn3
from attn3 import Item, schedule, Emit, f2u, KNAME, H, SEQ, D, ROWB, TILE, TILEB, NT, HEADB, CSCALE, OPAD

class Cfg:
    stamps = ""
    qnt = True
    kvnt = False
    otouch = True
    cwarm = True
    edist = 2
    look = 2
    shift = "-4.0"
    LLO = 2.0 ** -8
    LHI = 2.0 ** 24
    a1K = (4, 8, 12); a1V0 = (16, 20, 25); a1V1 = (29, 33, 37)
    a2K = (4, 8, 12)
    abl = ()
    slow = True
    def __init__(self, **kw):
        for k, v in kw.items(): setattr(self, k, v)

NS = 4
V_A = (1, 2, 3)
V_L = 4
V_KA = 8
V_VA = 10
V_DV = 14
V_B = (17, 18)
V_T = 19
V_S = 24
V_P = 88
V_K = 152
V_V = 200
V_Q = 224
def S(b, kb, qb): return V_S + b * 32 + (kb * 4 + qb) * 4
def P(i, qb): return V_P + i * 16 + qb * 4
def PT(t):
    return (t // 2) % 2 + (2 if t % 2 else 0)
def KF(kb, s): return V_K + (kb * 6 + s) * 4
def VP(j, t): return V_V + j * 8 + t * 4
def vr(b, n=4): return f"v[{b}:{b+n-1}]"
def ar(b, n=4): return f"a[{b}:{b+n-1}]"
def O(qb, dt): return (qb * 12 + dt) * 4
def QF(qb, s):
    n = qb * 6 + s
    return ar(192 + 4 * n) if n < 16 else vr(V_Q + 4 * (n - 16))

S_K, S_V, S_O, S_Q = 8, 12, 16, 20
S_W = 24
S_KOFF, S_VOFF = 25, 26
S_CNT = 31
S_KW, S_VW, S_QW = 35, 36, 38
S_T0, S_T1, S_T2, S_T3 = 40, 41, 42, 43
S_C = 44
S_LO, S_HI = 32, 33
S_BAD = 28
S_WS = 48
S_TS = 64

def softmax_items(b, qb, pi, t0, t1, edist, earliest=0):
    vals = [S(b, 0, qb) + i for i in range(4)] + [S(b, 1, qb) + i for i in range(4)]
    l = V_L + qb
    seq = []; prev = None
    for u in range(4):
        a, c = vals[2 * u], vals[2 * u + 1]
        E0 = Item('E', f"v_exp_f32 v{a}, v{a}", name=f"E{qb}.{2*u}")
        E1 = Item('E', f"v_exp_f32 v{c}, v{c}", name=f"E{qb}.{2*u+1}", deps=[(E0, 1)])
        A0 = Item('V', f"v_add_f32 v{l}, v{l}, v{a}", name=f"A{qb}.{2*u}", deps=[(E0, edist)] + ([(prev, 0)] if prev else []))
        A1 = Item('V', f"v_add_f32 v{l}, v{l}, v{c}", name=f"A{qb}.{2*u+1}", deps=[(E1, edist), (A0, 0)])
        prev = A1
        C = Item('V', f"v_cvt_pk_bf16_f32 v{P(pi,qb)+u}, v{a}, v{c}", name=f"C{qb}.{u}", deps=[(E0, edist), (E1, edist)])
        seq += [E0, E1, A0, A1, C]
    tot = sum(2 if it.kind == 'E' else 1 for it in seq)
    acc = 0
    for it in seq:
        it.target = t0 + (t1 - t0) * acc / tot
        it.earliest = earliest
        acc += 2 if it.kind == 'E' else 1
    return seq

def gen(cfg):
    KBASE = 0
    VBASE = NS * TILEB
    OBASE = 2 * NS * TILEB
    FLAG = OBASE + 4 * 2 * 16 * OPAD
    LDS = FLAG + 64
    assert LDS <= 163840
    e = Emit()
    e.raw(f"; @launch grid=(256,1,1) block=(256,1,1) lds={LDS}")
    e.raw('.amdgcn_target "amdgcn-amd-amdhsa--gfx950"')
    e.raw(".text")
    e.raw(f".globl {KNAME}")
    e.raw(".p2align 8")
    e.raw(f".type {KNAME},@function")
    e.lab(KNAME)
    def stamp(k, mode):
        if cfg.stamps == mode: e(f"s_memtime s[{76+2*k}:{77+2*k}]")
    KVF = " nt" if cfg.kvnt else ""
    QNT = " nt" if cfg.qnt else ""
    X0, X1, X2, T1, T2 = V_T, V_T + 1, V_T + 2, V_T + 3, V_T + 4
    e("s_cmp_ge_u32 s2, 256")
    e("s_cbranch_scc1 L_end")
    e("s_load_dwordx4 s[4:7], s[0:1], 0")
    e("s_load_dwordx4 s[56:59], s[0:1], 16")
    if cfg.stamps:
        e(f"s_load_dwordx2 s[60:61], s[0:1], {32 if cfg.stamps == 'dbg' else 40}")
        e(f"s_memtime s[{S_TS}:{S_TS+1}]")
        e(f"s_memrealtime s[{S_TS+2}:{S_TS+3}]")
    vq = []
    DUMMY = V_Q + 31
    if cfg.cwarm:
        e("s_getpc_b64 s[46:47]")
        e(f"v_lshlrev_b32 v{T2}, 7, v0")
        e(f"v_min_u32 v{T2}, L_end-{KNAME}-16, v{T2}")
        e(f"global_load_dword v{DUMMY}, v{T2}, s[46:47]")
        vq.append("CW")
    LANE = V_L
    e(f"v_and_b32 v{LANE}, 63, v0")
    e(f"v_lshrrev_b32 v{T1}, 6, v0")
    e(f"v_and_b32 v{X0}, 15, v0")
    e(f"v_readfirstlane_b32 s{S_W}, v{T1}")
    e(f"v_lshrrev_b32 v{X1}, 4, v{LANE}")
    e(f"s_and_b32 s{S_T0}, s2, 7")
    e(f"s_lshl_b32 s{S_T0}, s{S_T0}, 2")
    e(f"s_lshr_b32 s{S_T1}, s2, 6")
    e(f"s_add_u32 s{S_T0}, s{S_T0}, s{S_T1}")
    e(f"s_lshr_b32 s{S_T1}, s2, 3")
    e(f"s_and_b32 s{S_T1}, s{S_T1}, 7")
    e(f"s_mul_i32 s{S_T2}, s{S_T0}, {HEADB}")
    e(f"s_mul_i32 s{S_T3}, s{S_T1}, {256*ROWB}")
    e(f"s_mul_i32 s{S_T1}, s{S_W}, {64*ROWB}")
    e(f"s_add_u32 s{S_T3}, s{S_T3}, s{S_T1}")
    e(f"s_add_u32 s{S_T3}, s{S_T3}, s{S_T2}")
    e(f"s_mul_i32 s{S_T1}, s{S_W}, 192")
    for ii in range(3):
        e(f"v_add_u32 v{T1}, s{S_T1}, v{LANE}")
        if ii: e(f"v_add_u32 v{T1}, {64*ii}, v{T1}")
        e(f"v_mul_u32_u24 v{T2}, 2731, v{T1}")
        e(f"v_lshrrev_b32 v{T2}, 16, v{T2}")
        e(f"v_mul_u32_u24 v{X2}, 24, v{T2}")
        e(f"v_sub_u32 v{T1}, v{T1}, v{X2}")
        e(f"v_and_b32 v{X2}, 6, v{T2}")
        e(f"v_xor_b32 v{T1}, v{T1}, v{X2}")
        e(f"v_lshlrev_b32 v{T1}, 4, v{T1}")
        e(f"v_mul_u32_u24 v{T2}, {ROWB}, v{T2}")
        e(f"v_add_u32 v{V_DV+ii}, v{T1}, v{T2}")
        if ii: e(f"v_subrev_u32 v{V_DV+ii}, {1024*ii}, v{V_DV+ii}")
    e(f"s_mul_i32 s{S_T1}, s{S_W}, 3072")
    for ii in range(3): e(f"v_subrev_u32 v{V_A[ii]}, s{S_T1}, v{V_DV+ii}")
    e(f"s_mul_i32 s{S_QW}, s{S_W}, {2*16*OPAD}")
    e(f"s_add_u32 s{S_QW}, s{S_QW}, {OBASE}")
    e(f"s_add_u32 s{S_KW}, s{S_T1}, {KBASE}")
    e(f"s_add_u32 s{S_VW}, s{S_T1}, {VBASE}")
    e("s_waitcnt lgkmcnt(0)")
    stamp(0, 'pro2')
    def srd(sr, lo, hi, off, nrec):
        e(f"s_add_u32 s{sr}, s{lo}, s{off}")
        e(f"s_addc_u32 s{sr+1}, s{hi}, 0")
        e(f"s_mov_b32 s{sr+2}, {nrec}")
        e(f"s_mov_b32 s{sr+3}, 0x20000")
    srd(S_K, 6, 7, S_T2, HEADB)
    def dma(srd_, t, wreg, tag):
        e(f"s_mov_b32 s{S_T1}, {t*TILEB}")
        e(f"s_add_u32 m0, s{wreg}, {(t % NS)*TILEB}")
        e("s_nop 0")
        for ii in range(3):
            o = f" offset:{1024*ii}" if ii else ""
            e(f"buffer_load_dwordx4 v{V_DV+ii}, s[{srd_}:{srd_+3}], s{S_T1} offen{o}{KVF} lds")
            vq.append(tag)
    def dmaK(t): dma(S_K, t, S_KW, f"K{t}")
    def dmaV(t): dma(S_V, t, S_VW, f"V{t}")
    def vwait(tag):
        idx = max(i for i, t in enumerate(vq) if t == tag)
        e(f"s_waitcnt vmcnt({len(vq) - 1 - idx})")
    def qload1(qb, s):
        half, ii = s // 3, s % 3
        if ii == 0:
            e(f"s_mov_b32 s{S_T0}, {qb*16*ROWB + half*3072}")
            e(f"s_add_u32 m0, s{S_QW}, {(qb % 2)*16*OPAD + half*3072}")
            e("s_nop 0")
        o = f" offset:{1024*ii}" if ii else ""
        e(f"buffer_load_dwordx4 v{V_A[ii]}, s[{S_Q}:{S_Q+3}], s{S_T0} offen{o}{QNT} lds")
        vq.append(f"Q{qb}.{s}")
    dmaK(0)
    srd(S_Q, 4, 5, S_T3, 64 * ROWB)
    for s in range(6): qload1(0, s)
    stamp(1, 'pro2')
    srd(S_V, 56, 57, S_T2, HEADB)
    srd(S_O, 58, 59, S_T3, 64 * ROWB)
    e(f"v_and_b32 v{T1}, 6, v{X0}")
    e(f"v_xor_b32 v{T1}, v{T1}, v{X1}")
    e(f"v_lshlrev_b32 v{T1}, 4, v{T1}")
    e(f"v_mul_u32_u24 v{T2}, {ROWB}, v{X0}")
    e(f"v_add_u32 v{V_KA}, v{T1}, v{T2}")
    e(f"v_xor_b32 v{V_KA+1}, 64, v{V_KA}")
    e(f"v_lshrrev_b32 v{T1}, 2, v{X0}")
    e(f"v_lshl_add_u32 v{T1}, v{X1}, 2, v{T1}")
    e(f"v_and_b32 v{T2}, 6, v{T1}")
    e(f"v_bfe_u32 v{X2}, v{X0}, 1, 1")
    e(f"v_or_b32 v{T2}, v{T2}, v{X2}")
    e(f"v_lshlrev_b32 v{T2}, 4, v{T2}")
    e(f"v_and_b32 v{X2}, 1, v{X0}")
    e(f"v_lshl_add_u32 v{T2}, v{X2}, 3, v{T2}")
    e(f"v_mul_u32_u24 v{T1}, {ROWB}, v{T1}")
    e(f"v_add_u32 v{V_VA}, v{T1}, v{T2}")
    e(f"v_add_u32 v{V_VA}, {VBASE}, v{V_VA}")
    for j in range(1, 4):
        e(f"v_xor_b32 v{V_VA+j}, {j<<5}, v{V_VA}")
    if cfg.otouch:
        e(f"buffer_load_dword v{DUMMY}, off, s[{S_O}:{S_O+3}], 0")
        vq.append("OT")
    e(f"v_add_u32 v{V_B[0]}, s{S_QW}, v{V_KA}")
    e(f"v_add_u32 v{V_B[1]}, s{S_QW}, v{V_KA+1}")
    e(f"v_mov_b32 v{T1}, {FLAG}")
    e(f"v_mov_b32 v{T2}, 0")
    e(f"ds_write_b32 v{T1}, v{T2}")
    for i in range(4): e(f"v_mov_b32 v{V_L+i}, 0")
    e("s_nop 1")
    for i in range(12): e(f"v_mfma_f32_32x32x16_bf16 a[{16*i}:{16*i+15}], {vr(V_L)}, {vr(V_L)}, 0")
    e(f"s_mov_b32 s{S_C}, {hex(f2u(CSCALE))}")
    e(f"s_mov_b32 s{S_LO}, {hex(f2u(cfg.LLO))}")
    e(f"s_mov_b32 s{S_HI}, {hex(f2u(cfg.LHI))}")
    e(f"s_mov_b32 s{S_KOFF}, {5*TILEB}")
    e(f"s_mov_b32 s{S_VOFF}, {2*TILEB}")
    e(f"s_mov_b32 s{S_CNT}, 0")
    stamp(2, 'pro2')
    dmaK(1)
    for s in range(6): qload1(1, s)
    stamp(3, 'pro2')
    vwait("K0")
    e("s_waitcnt lgkmcnt(0)")
    e("s_barrier")
    stamp(4, 'pro2')
    def kread(kb, s, stage, dst=None):
        off = stage * TILEB + kb * 16 * ROWB + (s >> 1) * 128
        return f"ds_read_b128 {vr(KF(kb,s) if dst is None else dst)}, v{V_KA + (s & 1)} offset:{off}"
    def vread(dt, hh, stage, dst):
        off = stage * TILEB + hh * 16 * ROWB + (dt >> 2) * 128
        b = dst + 2 * hh
        return f"ds_read_b64_tr_b16 v[{b}:{b+1}], v{V_VA + (dt & 3)} offset:{off}"
    for kb in range(2):
        for s in range(6): e(kread(kb, s, 0))
    k1slots = [V_V + 4 * i for i in range(6)] + [P(1, q) for q in range(4)] + [P(2, 2), P(2, 3)]
    def K1F(kb, s): return k1slots[kb * 6 + s]
    def softmax_plain(b, qb, pi):
        vals = [S(b, 0, qb) + i for i in range(4)] + [S(b, 1, qb) + i for i in range(4)]
        for v in vals: e(f"v_exp_f32 v{v}, v{v}")
        e("s_nop 0")
        for v in vals: e(f"v_add_f32 v{V_L+qb}, v{V_L+qb}, v{v}")
        for u in range(4): e(f"v_cvt_pk_bf16_f32 v{P(pi,qb)+u}, v{vals[2*u]}, v{vals[2*u+1]}")
    pend = [[("Q", 2, s)] for s in range(6)] + [[("Q", 3, s)] for s in range(6)]
    late = {0: [("K", 2)], 3: [("K", 3)], 6: [("V", 0)], 8: [("V", 1)], 10: [("K", 4)]}
    for k in range(12): pend.append(late.get(k, []))
    def issue(lst):
        for it in lst:
            if it[0] == "Q": qload1(it[1], it[2])
            elif it[0] == "K": dmaK(it[1])
            else: dmaV(it[1])
    def qtmp(qb, s):
        n = qb * 6 + s
        if n >= 16: return V_Q + 4 * (n - 16)
        if s < 4: return P(3, s)
        return S(1, s - 4, 3)
    def qk01(qb, s):
        for kb in range(2):
            c = cfg.shift if s == 0 else vr(S(0, kb, qb))
            e(f"v_mfma_f32_16x16x32_bf16 {vr(S(0,kb,qb))}, {vr(KF(kb,s))}, {QF(qb,s)}, {c}")
        for kb in range(2):
            c = cfg.shift if s == 0 else vr(S(1, kb, qb))
            e(f"v_mfma_f32_16x16x32_bf16 {vr(S(1,kb,qb))}, {vr(K1F(kb,s))}, {QF(qb,s)}, {c}")
    for qb in range(4):
        if qb == 0:
            pass
        if qb == 3:
            vwait("K2")
            e("s_barrier")
        vwait(f"Q{qb}.5")
        stamp(2 + qb, 'pro')
        for s in range(6):
            off = (qb % 2) * 16 * OPAD + (s >> 1) * 128
            e(f"ds_read_b128 {vr(qtmp(qb,s))}, v{V_B[s & 1]} offset:{off}")
        if qb == 0:
            vwait("K1")
            e("s_waitcnt lgkmcnt(0)")
            e("s_barrier")
            for kb in range(2):
                for s in range(6): e(kread(kb, s, 1, K1F(kb, s)))
            e("s_waitcnt lgkmcnt(12)")
        else:
            e("s_waitcnt lgkmcnt(0)")
        for s in range(6):
            issue(pend.pop(0))
            src = qtmp(qb, s); n = qb * 6 + s
            for r in range(4):
                x = src + r
                t0, t1 = (X0, X1) if r % 2 == 0 else (X2, T1)
                e(f"v_and_b32 v{t0}, 0xffff0000, v{x}")
                e(f"v_lshlrev_b32 v{t1}, 16, v{x}")
                e(f"v_mul_f32 v{t0}, s{S_C}, v{t0}")
                e(f"v_mul_f32 v{t1}, s{S_C}, v{t1}")
                e(f"v_cvt_pk_bf16_f32 v{x}, v{t1}, v{t0}")
                if n < 16: e(f"v_accvgpr_write_b32 a{192+4*n+r}, v{x}")
                if r == 1 and s > 0:
                    if qb == 0 and s == 1: e("s_waitcnt lgkmcnt(0)")
                    qk01(qb, s - 1)
        e("s_nop 1")
        qk01(qb, 5)
        if qb == 3:
            for s in range(6): e(kread(0, s, 2))
        e("s_nop 7")
        e("s_nop 1")
        softmax_plain(0, qb, PT(0))
        if qb < 2: softmax_plain(1, qb, PT(1))
    assert not pend
    e("s_waitcnt lgkmcnt(0)")
    if cfg.stamps:
        e(f"s_memtime s[{S_TS+4}:{S_TS+5}]")
        e("s_waitcnt lgkmcnt(0)")

    def emit_gaps(n, mf, sh, gaps, tailf=None):
        for g in range(n):
            assert len(sh[g]) <= 1, (g, sh[g])
            if mf: e(mf(g))
            for x in sh[g]: e(x)
            for it in gaps[g]['D'] + gaps[g]['V']: e(it.text)
            if tailf: tailf(g)
    def dmas(sh, pos, srd_, soff):
        for ii in range(3):
            o = f" offset:{1024*ii}" if ii else ""
            sh[pos[ii]].append(f"buffer_load_dwordx4 v{V_DV+ii}, s[{srd_}:{srd_+3}], s{soff} offen{o}{KVF} lds")
    def qkf(b):
        def f(g):
            kb, qb, s = g // 24, (g % 24) // 6, g % 6
            d = vr(S(b, kb, qb))
            c = cfg.shift if s == 0 else d
            return f"v_mfma_f32_16x16x32_bf16 {d}, {vr(KF(kb,s))}, {QF(qb,s)}, {c}"
        return f

    def phaseA1(ep):
        st = 2 * ep
        items = []
        for s in range(6): items.append(Item('D', kread(1, s, (st + 2) % NS), pin=2 * s, name=f"K1.{s}"))
        for s in range(6): items.append(Item('D', kread(0, s, (st + 3) % NS), pin=26 + 2 * s, name=f"K0.{s}"))
        pi = PT(2 * ep + 1)
        items += softmax_items(1, 2, pi, 0, 22, cfg.edist) + softmax_items(1, 3, pi, 22, 44, cfg.edist)
        light = set(cfg.a1K) | set(cfg.a1V0) | set(cfg.a1V1)
        gaps = schedule(48, items, cfg.look, light)
        sh = {g: [] for g in range(48)}
        sh[0].append("s_waitcnt vmcnt(9)")
        sh[1].append("s_barrier")
        sh[cfg.a1K[0] - 2].append(f"s_add_u32 m0, s{S_KW}, {((st + 1) % NS)*TILEB}")
        dmas(sh, cfg.a1K, S_K, S_KOFF)
        sh[cfg.a1V0[0] - 2].append(f"s_add_u32 m0, s{S_VW}, {((st + 2) % NS)*TILEB}")
        dmas(sh, cfg.a1V0, S_V, S_VOFF)
        sh[cfg.a1V0[2] + 1].append(f"s_add_u32 s{S_VOFF}, s{S_VOFF}, {TILEB}")
        sh[cfg.a1V1[0] - 2].append(f"s_add_u32 m0, s{S_VW}, {((st + 3) % NS)*TILEB}")
        dmas(sh, cfg.a1V1, S_V, S_VOFF)
        sh[cfg.a1V1[2] + 1].append(f"s_add_u32 s{S_VOFF}, s{S_VOFF}, {TILEB}")
        sh[cfg.a1K[2] + 1].append(f"s_add_u32 s{S_KOFF}, s{S_KOFF}, {TILEB}")
        sh[cfg.a1K[2] + 3].append(f"s_min_u32 s{S_KOFF}, s{S_KOFF}, {(NT-1)*TILEB}")
        sh[23].append("s_waitcnt lgkmcnt(0)")
        sh[47].append("s_waitcnt lgkmcnt(0)")
        emit_gaps(48, qkf(0), sh, gaps)
        return gaps

    def phaseA2(ep):
        st = 2 * ep
        items = []
        for s in range(6): items.append(Item('D', kread(1, s, (st + 3) % NS), pin=2 * s, name=f"K1.{s}"))
        k = 0
        for dt in range(3):
            for t in range(2):
                for hh in range(2):
                    items.append(Item('T', vread(dt, hh, (st + t) % NS, VP(dt, t)), pin=24 + 3 * k, name=f"V{dt}.{t}.{hh}"))
                k += 1
        pi = PT(2 * ep + 2)
        items += softmax_items(0, 0, pi, 0, 22, cfg.edist) + softmax_items(0, 1, pi, 22, 44, cfg.edist)
        gaps = schedule(48, items, cfg.look, set(cfg.a2K))
        sh = {g: [] for g in range(48)}
        sh[0].append("s_waitcnt vmcnt(9)")
        sh[1].append("s_barrier")
        sh[cfg.a2K[0] - 2].append(f"s_add_u32 m0, s{S_KW}, {((st + 2) % NS)*TILEB}")
        dmas(sh, cfg.a2K, S_K, S_KOFF)
        sh[cfg.a2K[2] + 1].append(f"s_add_u32 s{S_KOFF}, s{S_KOFF}, {TILEB}")
        sh[cfg.a2K[2] + 3].append(f"s_min_u32 s{S_KOFF}, s{S_KOFF}, {(NT-1)*TILEB}")
        sh[23].append("s_waitcnt lgkmcnt(0)")
        sh[47].append("s_waitcnt lgkmcnt(0)")
        emit_gaps(48, qkf(1), sh, gaps)
        return gaps

    def phaseB2(ep):
        st = 2 * ep
        items = []
        for dt in range(3, 12):
            for t in range(2):
                for hh in range(2):
                    items.append(Item('T', vread(dt, hh, (st + t) % NS, VP(dt % 3, t)), pin=(dt - 2) * 8 + 2 * t, name=f"V{dt}.{t}.{hh}"))
        for s in range(6): items.append(Item('D', kread(0, s, st % NS), pin=77 + 2 * s, name=f"K0.{s}"))
        px, py = PT(2 * ep + 2), PT(2 * ep + 3)
        items += softmax_items(0, 2, px, 0, 23, cfg.edist) + softmax_items(0, 3, px, 23, 46, cfg.edist)
        items += softmax_items(1, 0, py, 46, 69, cfg.edist) + softmax_items(1, 1, py, 69, 92, cfg.edist)
        gaps = schedule(96, items, cfg.look)
        sh = {g: [] for g in range(96)}
        order = [(g, it) for g in range(96) for it in gaps[g]['D']]
        def wfor(name, at):
            idx = max(i for i, (g, it) in enumerate(order) if it.name == name)
            assert order[idx][0] < at
            return sum(1 for i, (g, it) in enumerate(order) if i > idx and g < at)
        for dt in range(3, 12):
            sh[8 * dt - 1].append(f"s_waitcnt lgkmcnt({wfor(f'V{dt}.1.1', 8 * dt - 1)})")
        sh[94].append("s_waitcnt lgkmcnt(0)")
        if ep == 0:
            sh[91].append(f"s_add_u32 s{S_CNT}, s{S_CNT}, 1")
            sh[92].append(f"s_cmp_eq_u32 s{S_CNT}, {NT // 4}")
        p0, p1 = PT(2 * ep), PT(2 * ep + 1)
        def mf(g):
            dt, qb, t = g // 8, (g % 8) // 2, g % 2
            return f"v_mfma_f32_16x16x32_bf16 {ar(O(qb,dt))}, {vr(VP(dt % 3, t))}, {vr(P(p0 if t == 0 else p1, qb))}, {ar(O(qb,dt))}"
        def tf(g):
            if g == 95: e("s_cbranch_scc1 L_tail" if ep == 0 else "s_branch L_loop")
        emit_gaps(96, mf, sh, gaps, tf)
        return gaps

    def filt(t):
        a = cfg.abl
        if 'nodma' in a and t.startswith('buffer_load'): return True
        if 'nods' in a and t.startswith('ds_read'): return True
        if 'noexp' in a and t.startswith('v_exp'): return True
        if 'noadd' in a and t.startswith('v_add_f32'): return True
        if 'nocvt' in a and t.startswith('v_cvt_pk'): return True
        if 'nobar' in a and t.startswith('s_barrier'): return True
        return False
    e(".p2align 6")
    e.lab("L_loop")
    e.filt = filt if cfg.abl else None
    info = {}
    for ep in range(2):
        info[f"A1{ep}"] = phaseA1(ep); info[f"A2{ep}"] = phaseA2(ep); info[f"B2{ep}"] = phaseB2(ep)
    e.filt = None
    e.lab("L_tail")
    e("s_waitcnt vmcnt(3)")
    e("s_barrier")
    p0, p1 = PT(62), PT(63)
    vsl = [V_V + 4 * i for i in range(6)] + [V_K + 4 * i for i in range(12)] + [S(0, 0, 0) + 4 * i for i in range(6)]
    def VT(dt, t): return vsl[2 * dt + t]
    rd = [vread(dt, hh, 2 + t, VT(dt, t)) for dt in range(12) for t in range(2) for hh in range(2)]
    E_WA, E_SO, E_RA = V_A[0], V_A[1], (V_A[2], V_B[0], V_B[1])
    adr = [f"v_and_b32 v{X0}, 15, v0", f"v_bfe_u32 v{X1}, v0, 4, 2",
           f"v_mul_u32_u24 v{E_WA}, {OPAD}, v{X0}", f"v_lshl_add_u32 v{E_WA}, v{X1}, 3, v{E_WA}",
           f"v_add_u32 v{E_WA}, s{S_QW}, v{E_WA}", f"v_and_b32 v{X0}, 63, v0", f"v_lshlrev_b32 v{E_SO}, 4, v{X0}"]
    for n in range(3):
        adr += [f"v_add_u32 v{X1}, {64*n}, v{X0}", f"v_mul_u32_u24 v{X2}, 2731, v{X1}", f"v_lshrrev_b32 v{X2}, 16, v{X2}",
                f"v_add_u32 v{X1}, v{X1}, v{X2}", f"v_lshlrev_b32 v{E_RA[n]}, 4, v{X1}", f"v_add_u32 v{E_RA[n]}, s{S_QW}, v{E_RA[n]}"]
    sm = []
    for qb in (2, 3):
        vals = [S(1, 0, qb) + i for i in range(4)] + [S(1, 1, qb) + i for i in range(4)]
        sm += [f"v_exp_f32 v{v}, v{v}" for v in vals]
    sm2 = []
    for qb in (2, 3):
        vals = [S(1, 0, qb) + i for i in range(4)] + [S(1, 1, qb) + i for i in range(4)]
        sm2 += [f"v_add_f32 v{V_L+qb}, v{V_L+qb}, v{v}" for v in vals]
        sm2 += [f"v_cvt_pk_bf16_f32 v{P(p1,qb)+u}, v{vals[2*u]}, v{vals[2*u+1]}" for u in range(4)]
    other = sm + adr + sm2
    while rd or other:
        for _ in range(2):
            if rd: e(rd.pop(0))
        for _ in range(3):
            if other: e(other.pop(0))
    e("s_waitcnt lgkmcnt(0)")
    if cfg.stamps:
        e(f"s_memtime s[{S_TS+6}:{S_TS+7}]")
    def pv_last(qb):
        L = []
        for dt in range(12):
            for t in range(2):
                L.append(f"v_mfma_f32_16x16x32_bf16 {ar(O(qb,dt))}, {vr(VT(dt,t))}, {vr(P(p0 if t == 0 else p1, qb))}, {ar(O(qb,dt))}")
        return L
    for x in pv_last(0): e(x)
    for sw in ("v_permlane16_swap_b32", "v_permlane32_swap_b32"):
        for qb in range(4): e(f"v_mov_b32 v{V_T+qb}, v{V_L+qb}")
        e("s_nop 0")
        for qb in range(4): e(f"{sw} v{V_L+qb}, v{V_T+qb}")
        e("s_nop 0")
        for qb in range(4): e(f"v_add_f32 v{V_L+qb}, v{V_L+qb}, v{V_T+qb}")
    e(f"v_add_f32 v{X0}, v{V_L}, v{V_L+1}")
    e(f"v_min3_f32 v{X1}, v{V_L}, v{V_L+1}, v{V_L+2}")
    e(f"v_add_f32 v{X0}, v{X0}, v{V_L+2}")
    e(f"v_min_f32 v{X1}, v{X1}, v{V_L+3}")
    e(f"v_add_f32 v{X0}, v{X0}, v{V_L+3}")
    e(f"v_cmp_nle_f32 s[{S_BAD}:{S_BAD+1}], s{S_LO}, v{X1}")
    e(f"v_cmp_nge_f32 vcc, s{S_HI}, v{X0}")
    for qb in range(4): e(f"v_rcp_f32 v{V_L+qb}, v{V_L+qb}")
    e(f"s_or_b64 s[{S_BAD}:{S_BAD+1}], s[{S_BAD}:{S_BAD+1}], vcc")
    def epi_items(qb):
        L = []
        boff = (qb % 2) * 16 * OPAD
        for dt in range(12):
            t = S(1, 0, 0) + (dt % 4) * 6
            for r in range(4): L.append(f"v_accvgpr_read_b32 v{t+r}, a{O(qb,dt)+r}")
            for r in range(4): L.append(f"v_mul_f32 v{t+r}, v{t+r}, v{V_L+qb}")
            L.append(f"v_cvt_pk_bf16_f32 v{t+4}, v{t}, v{t+1}")
            L.append(f"v_cvt_pk_bf16_f32 v{t+5}, v{t+2}, v{t+3}")
            L.append(f"ds_write_b64 v{E_WA}, v[{t+4}:{t+5}] offset:{boff + dt*32}")
        deadE, deadO = PT(60), PT(61)
        regs = [V_Q + 4 * k for k in range(6)] if qb % 2 == 0 else [P(deadE, q) for q in range(4)] + [P(deadO, 0), P(deadO, 1)]
        for n in range(6):
            L.append(f"ds_read_b128 {vr(regs[n])}, v{E_RA[n % 3]} offset:{boff + (n // 3) * 8 * OPAD}")
        for n in range(6):
            L.append(f"s_waitcnt lgkmcnt({5-n})")
            L.append(f"s_mov_b32 s{S_T1}, {qb*16*ROWB + (n // 3) * 3072}")
            L.append(f"buffer_store_dwordx4 {vr(regs[n])}, v{E_SO}, s[{S_O}:{S_O+3}], s{S_T1} offen offset:{(n % 3) * 1024}")
        return L
    for qb in range(4):
        L = epi_items(qb)
        m = pv_last(qb + 1) if qb < 3 else []
        step = max(1, (len(L) - 24) // 24)
        for n, ins in enumerate(L):
            if m and n % step == 0: e(m.pop(0))
            e(ins)
        for x in m: e(x)
        if qb < 3: e("s_nop 7")
    e(f"v_mov_b32 v{X0}, {FLAG}")
    e(f"s_cmp_eq_u64 s[{S_BAD}:{S_BAD+1}], 0")
    e("s_cbranch_scc1 L_noflag")
    e(f"v_mov_b32 v{X1}, 1")
    e(f"ds_write_b32 v{X0}, v{X1}")
    e.lab("L_noflag")
    e("s_waitcnt lgkmcnt(0)")
    e("s_barrier")
    e(f"ds_read_b32 v{X1}, v{X0}")
    e("s_waitcnt lgkmcnt(0)")
    e(f"v_readfirstlane_b32 s{S_T0}, v{X1}")
    e("s_nop 3")
    e(f"s_cmp_lg_u32 s{S_T0}, 0")
    if cfg.stamps:
        e("s_cselect_b32 s30, 1, 0")
    else:
        e("s_cbranch_scc1 L_slow")
    if cfg.stamps:
        e("s_waitcnt vmcnt(0)")
        e(f"s_memtime s[{S_TS+8}:{S_TS+9}]")
        e(f"s_memrealtime s[{S_TS+10}:{S_TS+11}]")
        e("s_waitcnt lgkmcnt(0)")
        e(f"s_mov_b32 s{S_WS}, s60"); e(f"s_mov_b32 s{S_WS+1}, s61"); e(f"s_mov_b32 s{S_WS+2}, 0x100000"); e(f"s_mov_b32 s{S_WS+3}, 0x20000")
        e(f"s_sub_u32 s{S_T0}, s{S_TS+8}, s{S_TS}"); e(f"v_mov_b32 v4, s{S_T0}")
        e(f"s_sub_u32 s{S_T0}, s{S_TS+10}, s{S_TS+2}"); e(f"v_mov_b32 v5, s{S_T0}")
        if cfg.stamps in ('pro', 'pro2'):
            for k in range(6):
                e(f"s_sub_u32 s{S_T0}, s{76+2*k}, s{S_TS}"); e(f"v_mov_b32 v{6+k}, s{S_T0}")
        else:
            e(f"s_sub_u32 s{S_T0}, s{S_TS+4}, s{S_TS}"); e(f"v_mov_b32 v6, s{S_T0}")
            e(f"s_sub_u32 s{S_T0}, s{S_TS+6}, s{S_TS+4}"); e(f"v_mov_b32 v7, s{S_T0}")
            e(f"s_sub_u32 s{S_T0}, s{S_TS+8}, s{S_TS+6}"); e(f"v_mov_b32 v8, s{S_T0}")
            for j in (9, 10, 11): e(f"v_mov_b32 v{j}, 0")
        if cfg.stamps == 'dbg':
            e(f"s_mov_b32 s{S_WS+2}, 64")
            e("s_mov_b32 s3, 0x1000")
            e("s_cmp_eq_u32 s2, 0"); e("s_cselect_b32 s3, 0, s3")
            e("s_cmp_eq_u32 s2, 77"); e("s_cselect_b32 s3, 20, s3")
            e("s_cmp_eq_u32 s2, 200"); e("s_cselect_b32 s3, 40, s3")
        else:
            e("s_lshl_b32 s3, s2, 5")
        e("v_mov_b32 v12, s3")
        e("v_cmp_eq_u32 vcc, 0, v0")
        e("s_and_saveexec_b64 s[62:63], vcc")
        e("s_cbranch_execz L_stampdone")
        e(f"buffer_store_dwordx4 v[4:7], v12, s[{S_WS}:{S_WS+3}], 0 offen")
        if cfg.stamps == 'dbg':
            e(f"buffer_store_dword v8, v12, s[{S_WS}:{S_WS+3}], 0 offen offset:16")
        else:
            e(f"buffer_store_dwordx4 v[8:11], v12, s[{S_WS}:{S_WS+3}], 0 offen offset:16")
        e.lab("L_stampdone")
        e("s_mov_b64 exec, s[62:63]")
        e("s_cmp_lg_u32 s30, 0")
        e("s_cbranch_scc1 L_slow")
    e.lab("L_end")
    e("s_endpgm")
    e.lab("L_slow")
    e("s_waitcnt vmcnt(0) lgkmcnt(0)")
    e("s_barrier")
    if cfg.slow:
        c3 = attn3.Cfg(stamps="", cwarm=False, otouch=False)
        t3, _ = attn3.gen(c3)
        lines = t3.split("\n")
        i0 = lines.index(KNAME + ":") + 1
        i1 = [i for i, x in enumerate(lines) if x.startswith(".section .rodata")][0]
        body = "\n".join(lines[i0:i1])
        body = re.sub(r"\bL_(\w+)", r"Z_\1", body)
        e.raw(body)
    else:
        e("s_endpgm")
    e.raw('.section .rodata,"a"')
    e.raw(".p2align 6")
    e.raw(f".amdhsa_kernel {KNAME}")
    e.raw("  .amdhsa_next_free_vgpr 512")
    e.raw("  .amdhsa_next_free_sgpr 96")
    e.raw("  .amdhsa_accum_offset 256")
    e.raw("  .amdhsa_group_segment_fixed_size 0")
    e.raw("  .amdhsa_kernarg_size 48")
    e.raw("  .amdhsa_user_sgpr_count 2")
    e.raw("  .amdhsa_user_sgpr_kernarg_segment_ptr 1")
    e.raw("  .amdhsa_system_sgpr_workgroup_id_x 1")
    e.raw(".end_amdhsa_kernel")
    return e.text(), info

def show(gaps, tag):
    print(tag)
    for g, x in enumerate(gaps):
        print(f"  {g:2d}: " + " | ".join(it.name for it in x['D'] + x['V']))

if __name__ == "__main__":
    import argparse
    ap = argparse.ArgumentParser()
    ap.add_argument("-o", default="standalone__gqa_softmax__prompt.s")
    ap.add_argument("--stamps", default="")
    ap.add_argument("--show", action="store_true")
    ap.add_argument("--set", nargs="*", default=[], help="cfg overrides k=v")
    a = ap.parse_args()
    cfg = Cfg(stamps=a.stamps)
    for kv in a.set:
        k, v = kv.split("=", 1)
        setattr(cfg, k, eval(v))
    txt, info = gen(cfg)
    open(a.o, "w").write(txt)
    if a.show:
        for k in ("A10", "A20", "B20"): show(info[k], k)
    print("wrote", a.o, len(txt), "bytes")
```
